```python
import torch

def _softmax(x, axis=-1):
    return torch.softmax(x, dim=axis)
def _gelu(x):
    return torch.nn.functional.gelu(x, approximate="tanh")
def _silu(x):
    return torch.nn.functional.silu(x)
def _sigmoid(x):
    return torch.sigmoid(x)
def _layernorm(x, axis=-1, eps=1e-5):
    m = x.mean(dim=axis, keepdim=True)
    v = x.var(dim=axis, keepdim=True, unbiased=False)
    return (x - m) / torch.sqrt(v + eps)
def _scatter_add(tgt, idx, src, axis=0):
    return tgt.clone().index_add_(axis, idx, src)
def _segment_sum(src, seg, n):
    out = torch.zeros((n,) + src.shape[1:], dtype=src.dtype)
    return out.index_add_(0, seg, src)
def _pad(x, pw):
    flat = tuple(v for pair in reversed(pw) for v in pair)
    return torch.nn.functional.pad(x, flat)

kernel_name = 'parallel_sum__linear_kernel_hedgehog__glu_gated_glu__prompt'

def setup_inputs():

    _w = (lambda a: (lambda t: t.to(torch.bfloat16) if t.is_floating_point() else t)(torch.as_tensor(a)))
    def _A_setup():
        B, S, D, H = 1, 2048, 512, 32
        Dh = D // H
        return {
            "x": _w((lambda *s: torch.randn(*s, dtype=torch.bfloat16) * 0.05)(B, S, D)),
            "wqkv": _w((lambda *s: torch.randn(*s, dtype=torch.bfloat16) * 0.4)(D, 3 * D)),
            "w_phi": _w((lambda *s: torch.randn(*s, dtype=torch.bfloat16) * 0.4)(H, Dh, Dh) * (Dh ** -0.5)),
            "wo": _w((lambda *s: torch.randn(*s, dtype=torch.bfloat16) * 0.1)(D, D)),
        }
    _A_in = _A_setup()

    def _B_setup():
        B, S, D, F = 1, 2048, 512, 1376
        return {
            "x": _w((lambda *s: torch.randn(*s, dtype=torch.bfloat16) * 0.05)(B, S, D)),
            "w_gate": _w((lambda *s: torch.randn(*s, dtype=torch.bfloat16) * 0.05)(D, F)),
            "w_up": _w((lambda *s: torch.randn(*s, dtype=torch.bfloat16) * 0.05)(D, F)),
            "w_down": _w((lambda *s: torch.randn(*s, dtype=torch.bfloat16) * 0.05)(F, D)),
        }
    _B_in = _B_setup()

    return {
        "A_x": _A_in["x"],
        "A_wqkv": _A_in["wqkv"],
        "A_w_phi": _A_in["w_phi"],
        "A_wo": _A_in["wo"],
        "B_x": _B_in["x"],
        "B_w_gate": _B_in["w_gate"],
        "B_w_up": _B_in["w_up"],
        "B_w_down": _B_in["w_down"],
    }

def reference(A_x, A_wqkv, A_w_phi, A_wo, B_x, B_w_gate, B_w_up, B_w_down):
    def _A_ref(x, wqkv, w_phi, wo):
        B, S, D = x.shape
        H = 32; Dh = D // H
        qkv = (lambda x, *d: x.permute(*d))((x @ wqkv).reshape(B, S, 3, H, Dh), 2, 0, 3, 1, 4)
        q, k, v = qkv[0], qkv[1], qkv[2]
        pq = torch.einsum("bhsd,hdf->bhsf", q, w_phi)
        pk = torch.einsum("bhsd,hdf->bhsf", k, w_phi)
        phi_q = torch.concatenate([_softmax(pq, axis=-1), _softmax(-pq, axis=-1)], axis=-1)
        phi_k = torch.concatenate([_softmax(pk, axis=-1), _softmax(-pk, axis=-1)], axis=-1)
        kv = torch.einsum("bhsf,bhsd->bhfd", phi_k, v)
        z  = torch.einsum("bhsf->bhf", phi_k)
        num = torch.einsum("bhqf,bhfd->bhqd", phi_q, kv)
        den = torch.einsum("bhqf,bhf->bhq", phi_q, z)[..., None] + 1e-6
        o = num / den
        return (lambda x, *d: x.permute(*d))(o, 0, 2, 1, 3).reshape(B, S, D) @ wo

    def _B_ref(x, w_gate, w_up, w_down):
        g = torch.einsum("bsd,df->bsf", x, w_gate)
        u = torch.einsum("bsd,df->bsf", x, w_up)
        h = _sigmoid(g) * u
        return torch.einsum("bsf,fd->bsd", h, w_down)

    x = A_x
    xn = _layernorm(x, axis=-1)
    return x + _A_ref(xn, A_wqkv, A_w_phi, A_wo) + _B_ref(xn, B_w_gate, B_w_up, B_w_down)
```

```python
import re, copy

def regs_of(tok):
    tok = tok.strip()
    neg = tok.lstrip('-').strip('|')
    m = re.fullmatch(r'([vsa])(\d+)', neg)
    if m: return [(m.group(1), int(m.group(2)))]
    m = re.fullmatch(r'([vsa])\[(\d+):(\d+)\]', neg)
    if m: return [(m.group(1), i) for i in range(int(m.group(2)), int(m.group(3)) + 1)]
    if neg == 'vcc': return [('vcc', 0)]
    if neg == 'exec': return [('exec', 0)]
    if neg == 'm0': return [('m0', 0)]
    return []

TRANS = ('v_exp_f32', 'v_log_f32', 'v_rcp_f32', 'v_rsq_f32', 'v_sqrt_f32')

class Ins:
    __slots__ = ('text', 'op', 'dst', 'src', 'cls', 'A', 'B', 'C', 'passes', 'lds', 'wide', 'dpp', 'states')
    def __init__(self, text):
        self.text = text
        t = text.split(';')[0].strip()
        parts = t.split(None, 1)
        op = parts[0]; self.op = op
        rest = parts[1] if len(parts) > 1 else ''
        ops = [o.strip() for o in rest.split(',')] if rest else []
        mods = ''
        if ops:
            last = ops[-1].split(None, 1)
            ops[-1] = last[0]
            mods = last[1] if len(last) > 1 else ''
        R = [regs_of(o) for o in ops]
        self.A = self.B = self.C = (); self.passes = 0; self.lds = False; self.wide = False
        self.dpp = ('row_' in mods or 'quad_perm' in mods or op.endswith('_dpp'))
        self.states = 1
        flat = lambda L: [r for x in L for r in x]
        if op.startswith('v_mfma'):
            self.cls = 'mfma'; self.dst = R[0]; self.A, self.B, self.C = R[1], R[2], R[3]
            self.src = flat(R[1:]); self.passes = 8 if '32x32x16' in op else 4
        elif op.startswith('v_'):
            self.cls = 'trans' if op.replace('_e32', '').replace('_e64', '') in TRANS else 'valu'
            if op.startswith('v_permlane') and 'swap' in op:
                self.dst = flat(R); self.src = flat(R)
            elif '_co_' in op:
                self.dst = R[0] + R[1]; self.src = flat(R[2:])
            else:
                self.dst = R[0] if R else []; self.src = flat(R[1:])
                if op.startswith(('v_fmac', 'v_dot2c', 'v_mac', 'v_pk_fmac')) or self.dpp: self.src = self.src + R[0]
                if op.startswith('v_cndmask') and len(ops) == 3: self.src = self.src + [('vcc', 0)]
        elif op.startswith('ds_'):
            self.cls = 'ds'
            if op.startswith(('ds_read', 'ds_bpermute', 'ds_swizzle', 'ds_permute')):
                self.dst = R[0]; self.src = flat(R[1:])
            else:
                self.dst = []; self.src = flat(R)
            if 'addtid' in op: self.lds = True
        elif op.startswith(('buffer_', 'global_')):
            self.cls = 'vmem'
            islds = (' lds' in ' ' + mods) or ('_lds_' in op)
            self.lds = islds
            if 'load' in op and not islds:
                self.dst = R[0]; self.src = flat(R[1:])
            elif 'atomic' in op and 'sc0' in mods:
                self.dst = R[0]; self.src = flat(R[1:]) if op.startswith('global_') else flat(R)
            else:
                self.dst = []; self.src = flat(R)
            if 'store' in op and ('x3' in op or 'x4' in op):
                self.wide = True
                self.C = R[0] if op.startswith('buffer_') else R[1]
        elif op.startswith(('s_load', 's_buffer_load', 's_memtime', 's_memrealtime')):
            self.cls = 'smem'; self.dst = R[0]; self.src = flat(R[1:])
        else:
            self.cls = 'salu'
            if op.startswith(('s_cmp', 's_waitcnt', 's_cbranch', 's_branch', 's_barrier', 's_nop', 's_endpgm', 's_sleep', 's_setprio', 's_bitcmp', 's_setpc')):
                self.dst = []; self.src = flat(R)
            else:
                self.dst = R[0] if R else []; self.src = flat(R[1:])
                if 'saveexec' in op: self.dst = self.dst + [('exec', 0)]
            if op == 's_nop': self.states = int(ops[0]) + 1

def need(p, c):
    n = 0
    pv = p.cls in ('valu', 'trans'); cv = c.cls in ('valu', 'trans')
    pd = set(p.dst)
    if pv:
        vd = {r for r in pd if r[0] == 'v'}; sd = pd - vd
        cs = set(c.src)
        if c.cls == 'mfma' and vd & cs: n = max(n, 2)
        if p.cls == 'trans' and c.cls in ('valu', 'vmem', 'ds') and vd & cs: n = max(n, 1)
        if cv and (c.op.startswith('v_permlane') or c.dpp) and vd & cs: n = max(n, 2)
        if cv and c.op.startswith(('v_readlane', 'v_readfirstlane')) and vd & cs: n = max(n, 1)
        if sd & cs:
            if cv: n = max(n, 4 if c.op.startswith(('v_readlane', 'v_writelane')) else 2)
            if c.cls == 'vmem': n = max(n, 5)
        if ('exec', 0) in pd: n = max(n, 5)
        if p.op.startswith('v_dot') and vd & (cs | set(c.dst)) and not (c.op == p.op): n = max(n, 3)
        if ('sdwa' in p.text or 'op_sel' in p.text) and cv and vd & (cs | set(c.dst)): n = max(n, 1)
    if p.cls == 'mfma':
        big = p.passes == 8
        if c.cls == 'mfma':
            if pd & (set(c.A) | set(c.B)): n = max(n, 12 if big else 8)
            if pd & set(c.C):
                if not (list(p.dst) == list(c.C) and p.passes == c.passes): n = max(n, 10 if big else 6)
            elif pd & set(c.dst): n = max(n, 12 if big else 8)
        elif cv or c.cls in ('ds', 'vmem'):
            if pd & (set(c.src) | set(c.dst)): n = max(n, 12 if big else 8)
            if set(p.C) & set(c.dst): n = max(n, 7 if big else 3)
    if p.cls == 'salu' and ('m0', 0) in pd and c.lds: n = max(n, 1)
    if p.wide and set(p.C) & set(c.dst): n = max(n, 2)
    return n

class Stream:
    def __init__(self):
        self.out = []
        self.hist = []
        self.vm = []
        self.lg = []
        self.smem = False
        self.nnop = 0
    def fork(self):
        s = Stream(); s.hist = list(self.hist); s.vm = list(self.vm); s.lg = list(self.lg); s.smem = self.smem
        return s
    def raw(self, text): self.out.append(text)
    def label(self, name): self.out.append(name + ':')
    def comment(self, t): self.out.append('  ; ' + t)
    def _emit(self, ins):
        d = 0; req = 0
        for p in reversed(self.hist):
            r = need(p, ins) - d
            if r > req: req = r
            d += p.states
            if d >= 12: break
        while req > 0:
            k = min(req, 16)
            nop = Ins(f's_nop {k-1}'); self.hist.append(nop); self.out.append('  ' + nop.text); req -= k; self.nnop += 1
        self.hist.append(ins); self.hist = self.hist[-14:]
        self.out.append('  ' + ins.text)
    def waitcnt(self, vm=None, lg=None):
        parts = []
        if vm is not None and vm < len(self.vm):
            vm = min(vm, 63); parts.append(f'vmcnt({vm})'); self.vm = self.vm[len(self.vm) - vm:] if vm else []
        if lg is not None and (lg < len(self.lg) or (lg == 0 and self.smem)):
            if self.smem: lg = 0
            lg = min(lg, 15); parts.append(f'lgkmcnt({lg})'); self.lg = self.lg[len(self.lg) - lg:] if lg else []
            if lg == 0: self.smem = False
        if parts: self._emit(Ins('s_waitcnt ' + ' '.join(parts)))
    def _pos(self, q, pred):
        last = -1
        for i, e in enumerate(q):
            if pred(e): last = i
        return None if last < 0 else len(q) - 1 - last
    def wait_tag(self, tag, lg=None):
        self.waitcnt(vm=self._pos(self.vm, lambda e: e[1] == tag), lg=lg)
    def wait_lg_tag(self, tag):
        self.waitcnt(lg=self._pos(self.lg, lambda e: e[1] == tag))
    def __call__(self, text, tag=None):
        ins = Ins(text)
        touch = set(ins.src) | set(ins.dst)
        v = self._pos(self.vm, lambda e: e[0] & touch)
        l = self._pos(self.lg, lambda e: e[0] & touch)
        if v is not None or l is not None: self.waitcnt(vm=v, lg=l)
        self._emit(ins)
        if ins.cls == 'vmem': self.vm.append((set(ins.dst), tag))
        elif ins.cls == 'ds': self.lg.append((set(ins.dst), tag))
        elif ins.cls == 'smem':
            self.lg.append((set(ins.dst), tag)); self.smem = True
    def lines(self, block):
        for l in block.strip().split('\n'):
            l = l.strip()
            if not l or l.startswith(';'): continue
            if l.endswith(':'): self.label(l[:-1])
            else: self(l)
    def text(self): return '\n'.join(self.out) + '\n'

def vr(a, n=1): return f'v{a}' if n == 1 else f'v[{a}:{a+n-1}]'
def sr(a, n=1): return f's{a}' if n == 1 else f's[{a}:{a+n-1}]'

def kernel_desc(name, vgpr=256, sgpr=96):
    return f""".amdhsa_kernel {name}
  .amdhsa_next_free_vgpr {vgpr}
  .amdhsa_next_free_sgpr {sgpr}
  .amdhsa_accum_offset {(vgpr+3)//4*4}
  .amdhsa_group_segment_fixed_size 0
  .amdhsa_kernarg_size 88
  .amdhsa_user_sgpr_count 2
  .amdhsa_user_sgpr_kernarg_segment_ptr 1
  .amdhsa_system_sgpr_workgroup_id_x 1
.end_amdhsa_kernel
"""
```

```python
import sys; sys.path.insert(0, 'work')
from asmlib import *
NAME = 'parallel_sum__linear_kernel_hedgehog__glu_gated_glu__prompt'
WS_H, WS_O, WS_ST, WS_CS, WS_KV, WS_FL = 0, 0x600000, 0x800000, 0x900000, 0xA00000, 0xB00000
MF = 'v_mfma_f32_32x32x16_bf16'

def srd(e, d, lo, hi, n, add=0):
    if add:
        e(f's_add_u32 s{d}, s{lo}, {add:#x}'); e(f's_addc_u32 s{d+1}, s{hi}, 0')
    else:
        e(f's_mov_b32 s{d}, s{lo}'); e(f's_mov_b32 s{d+1}, s{hi}')
    e(f's_mov_b32 s{d+2}, {n:#x}'); e(f's_mov_b32 s{d+3}, 0x20000')

def code_prefetch(e, label, endlabel, v, tid='v0'):
    e(f's_getpc_b64 s[90:91]')
    e.label(f'{label}_pc')
    e(f'v_lshlrev_b32 v{v}, 7, {tid}')
    e(f'v_min_u32 v{v}, {endlabel}-{label}_pc, v{v}')
    e(f'v_mov_b32 v{v+1}, s91')
    e(f'v_add_co_u32 v{v}, vcc, s90, v{v}')
    e(f'v_addc_co_u32 v{v+1}, vcc, 0, v{v+1}, vcc')
    e(f'global_load_dword v{v+2}, v[{v}:{v+1}], off', tag='pf')

class P2:
    sW, sRT, sCT, sREG = 20, 21, 22, 23
    WD, WO, H, O, X, OUT = 24, 28, 32, 36, 40, 44
    sT = 48
    vDMA, vA, vT0, vT1, vLane, vXo, vRd = 1, 2, 3, 4, 5, 6, 7
    vX = 8
    ACC = 16
    WF = 80
    AF = 96

def p2_setup(e, P, kX, kWO, kWD, kOUT, kWS):
    e(f's_and_b32 s{P.sT}, s2, 7'); e(f's_lshr_b32 s{P.sT+1}, s2, 3')
    e(f's_lshl_b32 s{P.sRT}, s{P.sT}, 2'); e(f's_and_b32 s{P.sT}, s{P.sT+1}, 3'); e(f's_add_u32 s{P.sRT}, s{P.sRT}, s{P.sT}')
    e(f's_lshr_b32 s{P.sCT}, s{P.sT+1}, 2')
    e(f's_mul_i32 s{P.sREG}, s{P.sW}, 20480')
    srd(e, P.WD, kWD, kWD+1, 1376*1024); srd(e, P.WO, kWO, kWO+1, 512*1024)
    srd(e, P.H, kWS, kWS+1, 86*65536, WS_H); srd(e, P.O, kWS, kWS+1, 32*65536, WS_O)
    srd(e, P.X, kX, kX+1, 2048*1024); srd(e, P.OUT, kOUT, kOUT+1, 2048*1024)
    L = P.vLane
    e(f'v_lshrrev_b32 v{P.vT0}, 3, v{L}')
    e(f'v_and_b32 v{P.vT1}, 7, v{L}')
    e(f'v_lshlrev_b32 v{P.vDMA}, 1, v{P.vT0}'); e(f'v_and_b32 v{P.vDMA}, 4, v{P.vDMA}')
    e(f'v_xor_b32 v{P.vDMA}, v{P.vDMA}, v{P.vT1}'); e(f'v_lshlrev_b32 v{P.vDMA}, 4, v{P.vDMA}')
    e(f'v_lshl_add_u32 v{P.vDMA}, v{P.vT0}, 10, v{P.vDMA}')
    e(f's_lshl_b32 s{P.sT}, s{P.sCT}, 7'); e(f'v_add_u32 v{P.vDMA}, s{P.sT}, v{P.vDMA}')
    e(f'v_lshlrev_b32 v{P.vXo}, 4, v{P.vT1}'); e(f'v_lshl_add_u32 v{P.vXo}, v{P.vT0}, 10, v{P.vXo}')
    e(f's_lshl_b32 s{P.sT+1}, s{P.sRT}, 16'); e(f's_add_u32 s{P.sT}, s{P.sT}, s{P.sT+1}')
    e(f's_lshl_b32 s{P.sT+1}, s{P.sW}, 13'); e(f's_add_u32 s{P.sT}, s{P.sT}, s{P.sT+1}')
    e(f'v_add_u32 v{P.vXo}, s{P.sT}, v{P.vXo}')
    e(f'v_and_b32 v{P.vRd}, 1, v{P.vT0}'); e(f'v_mul_u32_u24 v{P.vRd}, 272, v{P.vRd}')
    e(f'v_and_b32 v{P.vA}, 2, v{P.vT0}'); e(f'v_mul_u32_u24 v{P.vA}, 320, v{P.vA}'); e(f'v_add_u32 v{P.vRd}, v{P.vRd}, v{P.vA}')
    e(f'v_and_b32 v{P.vA}, 4, v{P.vT0}'); e(f'v_lshl_add_u32 v{P.vRd}, v{P.vA}, 5, v{P.vRd}')
    e(f'v_and_b32 v{P.vA}, 3, v{P.vT1}'); e(f'v_lshl_add_u32 v{P.vRd}, v{P.vA}, 5, v{P.vRd}')
    e(f'v_and_b32 v{P.vA}, 4, v{P.vT1}'); e(f'v_mul_u32_u24 v{P.vA}, 1280, v{P.vA}'); e(f'v_add_u32 v{P.vRd}, v{P.vRd}, v{P.vA}')
    e(f's_lshr_b32 s{P.sT}, s{P.sW}, 2'); e(f's_lshl_b32 s{P.sT}, s{P.sT}, 3'); e(f's_and_b32 s{P.sT+1}, s{P.sW}, 3')
    e(f's_add_u32 s{P.sT}, s{P.sT}, s{P.sT+1}'); e(f's_mul_i32 s{P.sT}, s{P.sT}, 1280')
    e(f'v_add_u32 v{P.vRd}, s{P.sT}, v{P.vRd}')
    e(f's_lshl_b32 s{P.sT}, s{P.sRT}, 11'); e(f'v_lshlrev_b32 v{P.vA}, 4, v{L}'); e(f'v_add_u32 v{P.vA}, s{P.sT}, v{P.vA}')
    e(f'v_lshrrev_b32 v{P.vT0}, 5, v{L}'); e(f'v_lshlrev_b32 v{P.vT0}, 9, v{P.vT0}')
    e(f'v_bfe_u32 v{P.vT1}, v{L}, 2, 2'); e(f'v_lshl_add_u32 v{P.vT0}, v{P.vT1}, 7, v{P.vT0}')
    e(f'v_and_b32 v{P.vT1}, 8, v{L}'); e(f'v_lshl_add_u32 v{P.vT0}, v{P.vT1}, 3, v{P.vT0}')
    e(f'v_and_b32 v{P.vT1}, 16, v{L}'); e(f'v_lshl_add_u32 v{P.vT0}, v{P.vT1}, 1, v{P.vT0}')
    e(f'v_and_b32 v{P.vT1}, 3, v{L}'); e(f'v_lshl_add_u32 v{P.vT0}, v{P.vT1}, 3, v{P.vT0}')
    e(f'v_add_u32 v{P.vT0}, s{P.sREG}, v{P.vT0}')
    e(f'v_xor_b32 v{P.vT1}, 64, v{P.vT0}')
    e(f's_mul_i32 s{P.sT+2}, s{P.sW}, {11*16384}'); e(f's_lshl_b32 s{P.sT+3}, s{P.sW}, 16')
    e(f's_mul_i32 s{P.sT+4}, s{P.sW}, {11*65536}'); e(f's_lshl_b32 s{P.sT+5}, s{P.sW}, 18')

def p2_dma(e, P, i):
    srdn, base, k = (P.WD, P.sT+2, i) if i < 11 else (P.WO, P.sT+3, i - 11)
    for hf in range(2):
        e(f's_add_u32 m0, s{P.sREG}, {(i % 10) * 2048 + hf * 1024}')
        e(f's_add_u32 s{P.sT}, s{base}, {k * 16384 + hf * 8192}')
        e(f'buffer_load_dwordx4 v{P.vDMA}, s[{srdn}:{srdn+3}], s{P.sT} offen lds', tag=f'w{i}')

def p2_aload(e, P, i, sc=''):
    srdn, base, k = (P.H, P.sT+4, i) if i < 11 else (P.O, P.sT+5, i - 11)
    e(f's_add_u32 s{P.sT}, s{base}, {k * 65536}')
    for mt in range(2):
        e(f'buffer_load_dwordx4 {vr(P.AF + i*8 + mt*4, 4)}, v{P.vA}, s[{srdn}:{srdn+3}], s{P.sT} offen offset:{mt*1024}{sc}')

def p2_wread(e, P, i):
    b = P.WF + (i & 1) * 8
    e.wait_tag(f'w{i}')
    for nt in range(2):
        for r in range(2):
            e(f'ds_read_b64_tr_b16 {vr(b + nt*4 + r*2, 2)}, v{P.vT0 + nt} offset:{(i % 10) * 2048 + r * 1024}', tag=f'r{i}')

def p2_mfma(e, P, i):
    b = P.WF + (i & 1) * 8
    for nt in range(2):
        for mt in range(2):
            acc = vr(P.ACC + (mt*2 + nt) * 16, 16)
            e(f'{MF} {acc}, {vr(P.AF + i*8 + mt*4, 4)}, {vr(b + nt*4, 4)}, {acc if i else 0}')

def p2_tail(e, P):
    e(f's_mov_b32 m0, s{P.sREG}')
    skew = [0, 272, 640, 912]
    for t in range(4):
        for j in range(16):
            e(f'ds_write_addtid_b32 v{P.ACC + t*16 + j} offset:{(t*4 + (j >> 2)) * 1280 + skew[j & 3]}')
    e(f'v_add_u32 v{P.vT0}, {3*20480}, v{P.vRd}'); e(f'v_add_u32 v{P.vT1}, {6*20480}, v{P.vRd}')
    e.waitcnt(lg=0)
    e('s_barrier')
    R = P.AF
    for w in range(8):
        a = [P.vRd, P.vT0, P.vT1][w // 3]
        for q in range(2):
            e(f'ds_read_b128 {vr(R + w*8 + q*4, 4)}, v{a} offset:{(w % 3) * 20480 + q*16}')
    S = P.ACC
    for q in range(4):
        e(f'v_lshlrev_b32 v{S + 2*q}, 16, v{P.vX + q}'); e(f'v_and_b32 v{S + 2*q + 1}, 0xffff0000, v{P.vX + q}')
    for w in range(8):
        for q in range(8):
            e(f'v_add_f32 v{S + q}, v{S + q}, v{R + w*8 + q}')
    for q in range(4):
        e(f'v_cvt_pk_bf16_f32 v{S + 8 + q}, v{S + 2*q}, v{S + 2*q + 1}')
    e(f'buffer_store_dwordx4 {vr(S + 8, 4)}, v{P.vXo}, s[{P.OUT}:{P.OUT+3}], 0 offen')

def gen_k2(name):
    e = Stream(); P = P2
    e('s_cmp_ge_u32 s2, 256'); e(f's_cbranch_scc1 {name}_end')
    e('s_load_dwordx2 s[4:5], s[0:1], 0'); e('s_load_dwordx2 s[6:7], s[0:1], 24')
    e('s_load_dwordx4 s[8:11], s[0:1], 56'); e('s_load_dwordx2 s[12:13], s[0:1], 80')
    code_prefetch(e, name, name + '_end', 12)
    e(f'v_lshrrev_b32 v{P.vT0}, 6, v0'); e(f'v_and_b32 v{P.vLane}, 63, v0'); e(f'v_readfirstlane_b32 s{P.sW}, v{P.vT0}')
    p2_setup(e, P, 4, 6, 8, 10, 12)
    for i in range(10):
        p2_dma(e, P, i); p2_aload(e, P, i)
    e(f'buffer_load_dwordx4 {vr(P.vX, 4)}, v{P.vXo}, s[{P.X}:{P.X+3}], 0 offen')
    p2_wread(e, P, 0)
    for i in range(15):
        if i + 1 < 15: p2_wread(e, P, i + 1)
        if i < 5:
            e.wait_lg_tag(f'r{i}')
            p2_dma(e, P, i + 10); p2_aload(e, P, i + 10)
        p2_mfma(e, P, i)
    p2_tail(e, P)
    e.label(f'{name}_end'); e('s_endpgm')
    return e.text()

def wrap(kernels):
    hdr = open(f'cdna_kernels/{NAME}.s.ref').read().split('; Override')[0]
    if len(kernels) == 1 and kernels[0][0] == NAME + '_kernel':
        hdr += f'; @launch grid=(256,1,1) block=({kernels[0][2]},1,1) lds={kernels[0][3]}\n'
    else:
        for n, t, b, l in kernels: hdr += f'; @launch kernel={n} grid=(256,1,1) block=({b},1,1) lds={l}\n'
    s = hdr + '.amdgcn_target "amdgcn-amd-amdhsa--gfx950"\n.text\n'
    seen = []
    for n, t, b, l in kernels:
        if n in seen: continue
        seen.append(n)
        s += f'.globl {n}\n.p2align 8\n.type {n},@function\n{n}:\n{t}'
    s += '.p2align 8\n.fill 64, 4, 0xBF810000\n'
    s += '.section .rodata,"a"\n'
    for n in seen: s += '.p2align 6\n' + kernel_desc(n)
    return s

if __name__ == '__main__':
    s = wrap([('k2_kernel', gen_k2('k2_kernel'), 512, 163840)])
    open('k2.s', 'w').write(s)
```

```python
import sys; sys.path.insert(0, 'work')
from asmlib import *
from gen import NAME, MF, srd, code_prefetch, wrap
WS_H, WS_PQ, WS_KV, WS_XN = 0, 0x600000, 0xA00000, 0xB00000
LOG2E = 0x3fb8aa3b

def wave_sum(e, v):
    for d in ('row_shr:1', 'row_shr:2', 'row_shr:4', 'row_shr:8'):
        e(f'v_add_f32_dpp v{v}, v{v}, v{v} {d} row_mask:0xf bank_mask:0xf bound_ctrl:0')
    e(f'v_add_f32_dpp v{v}, v{v}, v{v} row_bcast:15 row_mask:0xa bank_mask:0xf')
    e(f'v_add_f32_dpp v{v}, v{v}, v{v} row_bcast:31 row_mask:0xc bank_mask:0xf')

def gen_k0(name):
    e = Stream()
    e('s_cmp_ge_u32 s2, 256'); e(f's_cbranch_scc1 {name}_end')
    e('s_load_dwordx2 s[4:5], s[0:1], 0'); e('s_load_dwordx2 s[6:7], s[0:1], 80')
    e('s_lshl_b32 s3, s2, 13'); e('v_lshlrev_b32 v1, 4, v0'); e('v_add_u32 v2, s3, v1')
    srd(e, 8, 4, 5, 2048*1024); srd(e, 12, 6, 7, 2048*1024, WS_XN); srd(e, 16, 6, 7, 32*4096, WS_KV)
    e('buffer_load_dwordx4 v[4:7], v2, s[8:11], 0 offen')
    e('v_mov_b32 v20, 0'); e('v_lshlrev_b32 v3, 2, v0'); e('s_lshl_b32 s3, s2, 9')
    e('v_cmp_gt_u32 vcc, 128, v0'); e('s_and_saveexec_b64 s[20:21], vcc')
    e('buffer_store_dword v20, v3, s[16:19], s3 offen')
    e('s_mov_b64 exec, s[20:21]')
    for q in range(4):
        e(f'v_lshlrev_b32 v{8+2*q}, 16, v{4+q}'); e(f'v_and_b32 v{9+2*q}, 0xffff0000, v{4+q}')
    e('v_add_f32 v16, v8, v9')
    for q in range(2, 8): e(f'v_add_f32 v16, v16, v{8+q}')
    wave_sum(e, 16)
    e('v_readlane_b32 s22, v16, 63')
    e('v_mov_b32 v17, 0x3b000000'); e('v_mul_f32 v17, s22, v17')
    e('v_sub_f32 v18, v8, v17'); e('v_mul_f32 v16, v18, v18')
    for q in range(1, 8):
        e(f'v_sub_f32 v18, v{8+q}, v17'); e('v_fmac_f32 v16, v18, v18')
    wave_sum(e, 16)
    e('v_readlane_b32 s22, v16, 63')
    e('v_mov_b32 v16, 0x3b000000'); e('v_mul_f32 v16, s22, v16')
    e('v_cvt_pk_bf16_f32 v16, v16, v17')
    e('v_and_b32 v17, 0xffff0000, v16'); e('v_lshlrev_b32 v16, 16, v16')
    e('v_add_f32 v16, 0x3727c5ac, v16')
    e('v_cvt_pk_bf16_f32 v16, v16, v16'); e('v_lshlrev_b32 v16, 16, v16')
    e('v_sqrt_f32 v16, v16')
    e('v_cvt_pk_bf16_f32 v16, v16, v16'); e('v_lshlrev_b32 v16, 16, v16')
    e('v_rcp_f32 v16, v16')
    for q in range(8): e(f'v_sub_f32 v{8+q}, v{8+q}, v17')
    for q in range(4):
        e(f'v_cvt_pk_bf16_f32 v{4+q}, v{8+2*q}, v{9+2*q}')
    for q in range(4):
        e(f'v_lshlrev_b32 v{8+2*q}, 16, v{4+q}'); e(f'v_and_b32 v{9+2*q}, 0xffff0000, v{4+q}')
    for q in range(8): e(f'v_mul_f32 v{8+q}, v{8+q}, v16')
    for q in range(4):
        e(f'v_cvt_pk_bf16_f32 v{4+q}, v{8+2*q}, v{9+2*q}')
    e('buffer_store_dwordx4 v[4:7], v2, s[12:15], 0 offen')
    e.label(f'{name}_end'); e('s_endpgm')
    return e.text()

class K1:
    sW, sR, sG, sTP, sCG, sCH, sP, sA = 20, 21, 22, 23, 24, 25, 26, 27
    X, WQ, GU, PH, H, PQ, KV = 28, 32, 36, 40, 44, 48, 52
    sT = 56
    sL2E, sNL2E = 64, 65
    sLD = 66
    sLD2 = 67
    vL = 1
    vD = 2
    vXA = 8
    vWA = 16
    vT = 20
    vST = 24
    vPH = 32
    XF = 40
    WF = 56
    ACC = 80
    TP = 160
XS = 16384
KVB, KVS = 49152, 16384
GU5, GU5S, GU5U = 98304, 20736, 10240 + 128
QB, QS = 49152, 8192
GU6, GU6S, GU6U = 73728, 24640, 12288 + 32

def k1_common(e, K, name):
    e('s_cmp_ge_u32 s2, 256'); e(f's_cbranch_scc1 {name}_end')
    e('s_load_dwordx4 s[4:7], s[0:1], 8'); e('s_load_dwordx4 s[8:11], s[0:1], 40'); e('s_load_dwordx2 s[12:13], s[0:1], 80')
    code_prefetch(e, name, name + '_end', 240)
    T = K.sT
    e(f'v_lshrrev_b32 v{K.vT}, 6, v0'); e(f'v_and_b32 v{K.vL}, 63, v0'); e(f'v_readfirstlane_b32 s{K.sW}, v{K.vT}')
    e(f's_and_b32 s{T}, s2, 7'); e(f's_lshr_b32 s{T+1}, s2, 3')
    e(f's_and_b32 s{K.sR}, s{T}, 1'); e(f's_lshl_b32 s{K.sR}, s{K.sR}, 3'); e(f's_and_b32 s{T+2}, s{T+1}, 7'); e(f's_add_u32 s{K.sR}, s{K.sR}, s{T+2}')
    e(f's_lshr_b32 s{T+1}, s{T+1}, 3')
    e(f's_lshl_b32 s{K.sCH}, s{T+1}, 1'); e(f's_add_u32 s{K.sCH}, s{K.sCH}, s{K.sR}'); e(f's_and_b32 s{K.sCH}, s{K.sCH}, 7')
    e(f's_and_b32 s{K.sG}, s{T}, 6'); e(f's_lshr_b32 s{T+2}, s{T+1}, 1'); e(f's_add_u32 s{K.sG}, s{K.sG}, s{T+2}')
    e(f's_and_b32 s{T+3}, s{T+1}, 1')
    e(f's_mul_i32 s{K.sP}, s{K.sG}, 11'); e(f's_min_u32 s{K.sP}, s{K.sP}, 75')
    e(f's_and_b32 s{T+2}, s{K.sP}, 1'); e(f's_sub_u32 s{T+4}, 6, s{T+3}')
    e(f's_cmp_eq_u32 s{T+2}, s{T+3}'); e(f's_cselect_b32 s{T+4}, s{T+4}, 0'); e(f's_add_u32 s{K.sP}, s{K.sP}, s{T+4}')
    e(f's_and_b32 s{K.sTP}, s{K.sW}, 1'); e(f's_bfe_u32 s{K.sCG}, s{K.sW}, 0x10001'); e(f's_and_b32 s{K.sA}, s{K.sW}, 3')
    e(f's_mov_b32 s{K.sL2E}, {LOG2E:#x}'); e(f's_mov_b32 s{K.sNL2E}, {LOG2E | 0x80000000:#x}')
    srd(e, K.X, 12, 13, 2048*1024, WS_XN); srd(e, K.WQ, 4, 5, 512*3072)
    e(f's_cmp_eq_u32 s{K.sCG}, 0'); e(f's_cselect_b32 s8, s8, s10'); e(f's_cselect_b32 s9, s9, s11')
    srd(e, K.GU, 8, 9, 512*2752); srd(e, K.PH, 6, 7, 32*512)
    srd(e, K.H, 12, 13, 86*65536, WS_H); srd(e, K.PQ, 12, 13, 64*65536, WS_PQ); srd(e, K.KV, 12, 13, 32*4096, WS_KV)
    e(f's_lshr_b32 s{T+2}, s{K.sW}, 2'); e(f's_lshl_b32 s{T+3}, s{T+3}, 1'); e(f's_add_u32 s{T+2}, s{T+2}, s{T+3}')
    e(f's_cmp_eq_u32 s{T+2}, 1'); e(f's_cbranch_scc1 {name}_r1')
    e(f's_cmp_eq_u32 s{T+2}, 2'); e(f's_cbranch_scc1 {name}_r2')
    e(f's_cmp_eq_u32 s{T+2}, 3'); e(f's_cbranch_scc1 {name}_r3')

def k1_dma_setup(e, K, role):
    L, T, V = K.vL, K.sT, K.vT
    if role in (0, 2):
        e(f'v_lshrrev_b32 v{V}, 3, v{L}'); e(f'v_and_b32 v{V+1}, 7, v{L}')
        e(f'v_lshrrev_b32 v{V+2}, 4, v{L}'); e(f's_lshl_b32 s{T}, s{K.sTP}, 2'); e(f'v_add_u32 v{V+2}, s{T}, v{V+2}')
        e(f'v_xor_b32 v{V+2}, v{V+2}, v{V+1}'); e(f'v_lshlrev_b32 v{V+2}, 4, v{V+2}')
        e(f'v_lshl_add_u32 v{K.vD}, v{V}, 10, v{V+2}')
        e(f's_lshl_b32 s{T}, s{K.sR}, 17'); e(f's_lshl_b32 s{T+1}, s{K.sA}, 13'); e(f's_add_u32 s{T}, s{T}, s{T+1}')
        e(f'v_add_u32 v{K.vD}, s{T}, v{K.vD}')
        e(f'v_lshlrev_b32 v{V+2}, 1, v{V}'); e(f'v_and_b32 v{V+2}, 4, v{V+2}'); e(f'v_xor_b32 v{V+2}, v{V+2}, v{V+1}')
        e(f'v_lshlrev_b32 v{V+2}, 4, v{V+2}'); e(f'v_mul_u32_u24 v{V}, 3072, v{V}'); e(f'v_add_u32 v{V+2}, v{V+2}, v{V}')
        e(f's_mul_i32 s{T}, s{K.sA}, {8*3072}'); e(f's_lshl_b32 s{T+1}, s{K.sG}, 7'); e(f's_add_u32 s{T}, s{T}, s{T+1}')
        if role == 0: e(f's_add_u32 s{T}, s{T}, 1024')
        e(f'v_add_u32 v{K.vD+1}, s{T}, v{V+2}')
        if role == 0:
            e(f'v_xor_b32 v{K.vD+2}, 32, v{K.vD+1}'); e(f'v_add_u32 v{K.vD+2}, 1024, v{K.vD+2}')
        e(f's_lshl_b32 s{K.sLD}, s{K.sA}, 10')
    else:
        n, mul, npat = (10, 6554, 5) if role == 1 else (12, 5462, 3)
        e(f's_mul_i32 s{T}, s{K.sTP}, {32*2752}'); e(f's_lshl_b32 s{T+1}, s{K.sP}, 5'); e(f's_add_u32 s{T}, s{T}, s{T+1}')
        for p in range(npat):
            e(f'v_add_u32 v{V}, {64*p}, v{L}'); e(f'v_mul_u32_u24 v{V+1}, {mul}, v{V}'); e(f'v_lshrrev_b32 v{V+1}, 16, v{V+1}')
            e(f'v_mul_u32_u24 v{V+1}, {2752 - 16*n}, v{V+1}'); e(f'v_lshl_add_u32 v{V+1}, v{V}, 4, v{V+1}')
            e(f'v_add_u32 v{K.vD+p}, s{T}, v{V+1}')
        base, uo = (GU5, GU5U) if role == 1 else (GU6, GU6U)
        e(f's_mul_i32 s{K.sLD}, s{K.sCG}, {uo}'); e(f's_mul_i32 s{T}, s{K.sTP}, {32*16*n}')
        e(f's_add_u32 s{K.sLD}, s{K.sLD}, s{T}'); e(f's_add_u32 s{K.sLD}, s{K.sLD}, {base}')

def k1_dma(e, K, role, c):
    T = K.sT; s = c % 3; out = []
    def pre():
        e(f's_add_u32 s{T+4}, s{K.sCH}, {c}'); e(f's_and_b32 s{T+4}, s{T+4}, 7')
        if role in (0, 2):
            e(f's_lshl_b32 s{T+5}, s{T+4}, 7'); e(f's_mul_i32 s{T+4}, s{T+4}, {64*3072}')
        else: e(f's_mul_i32 s{T+4}, s{T+4}, {64*2752}')
    def mk(v, srdn, sb, add, lds, first):
        def f():
            if first: pre()
            e(f's_add_u32 m0, s{K.sLD}, {lds}')
            if add: e(f's_add_u32 s{T}, s{sb}, {add}'); so = T
            else: so = sb
            e(f'buffer_load_dwordx4 v{v}, s[{srdn}:{srdn+3}], s{so} offen lds', tag=f'c{c}')
        return f
    L = []
    if role in (0, 2):
        for q in range(4): L.append((K.vD, K.X, T+5, q*32768, s*XS + q*4096))
        for q in range(2):
            if role == 0:
                L.append((K.vD+1, K.WQ, T+4, q*32*3072, KVB + s*KVS + q*4096))
                L.append((K.vD+2, K.WQ, T+4, q*32*3072, KVB + s*KVS + 8192 + q*4096))
            else: L.append((K.vD+1, K.WQ, T+4, q*32*3072, QB + s*QS + q*4096))
    elif role == 1:
        for p in range(5): L.append((K.vD+p, K.GU, T+4, 0, s*GU5S + p*1024))
    else:
        for q in range(2):
            for p in range(3): L.append((K.vD+p, K.GU, T+4, q*16*2752, s*GU6S + q*3072 + p*1024))
    return [mk(*a, i == 0) for i, a in enumerate(L)]

def k1_read_setup(e, K, role):
    L, T, V = K.vL, K.sT, K.vT
    e(f'v_and_b32 v{V}, 31, v{L}'); e(f'v_bfe_u32 v{V+1}, v{L}, 1, 3'); e(f'v_lshrrev_b32 v{V+2}, 5, v{L}')
    e(f'v_xor_b32 v{V+1}, v{V+1}, v{V+2}'); e(f'v_lshlrev_b32 v{V+1}, 4, v{V+1}'); e(f'v_lshl_add_u32 v{V+1}, v{V}, 7, v{V+1}')
    e(f's_lshl_b32 s{T}, s{K.sTP}, 1'); e(f's_add_u32 s{T}, s{T}, s{K.sCG}'); e(f's_lshl_b32 s{T+1}, s{T}, 12')
    e(f'v_add_u32 v{K.vXA}, s{T+1}, v{V+1}')
    for i in range(1, 8): e(f'v_xor_b32 v{K.vXA+i}, {(i & 3)*32 + (i >> 2)*4096}, v{K.vXA}')
    e(f's_lshl_b32 s{T+1}, s{K.sR}, 2'); e(f's_add_u32 s{T}, s{T}, s{T+1}'); e(f's_lshl_b32 s{T}, s{T}, 10')
    e(f'v_lshlrev_b32 v{K.vST}, 4, v{L}'); e(f'v_add_u32 v{K.vST}, s{T}, v{K.vST}'); e(f'v_xor_b32 v{K.vST+1}, 1024, v{K.vST}')
    e(f'v_bfe_u32 v{V}, v{L}, 2, 2'); e(f'v_lshl_add_u32 v{V}, v{V+2}, 3, v{V}')
    e(f'v_and_b32 v{V+1}, 3, v{L}'); e(f'v_lshlrev_b32 v{V+1}, 3, v{V+1}')
    e(f'v_bfe_u32 v{V+2}, v{L}, 4, 1')
    W = K.vWA
    if role in (0, 2):
        e(f'v_lshl_add_u32 v{W}, v{V}, 7, v{V+1}')
        e(f'v_and_b32 v{V+3}, 8, v{L}'); e(f'v_lshl_add_u32 v{W}, v{V+3}, 3, v{W}'); e(f'v_lshl_add_u32 v{W}, v{V+2}, 5, v{W}')
        e(f's_lshl_b32 s{T}, s{K.sCG}, 6'); e(f'v_xor_b32 v{W}, s{T}, v{W}')
        e(f'v_add_u32 v{W}, {KVB}, v{W}')
        if role == 0:
            e(f'v_lshl_add_u32 v{W}, v{V+2}, 13, v{W}'); e(f'v_xor_b32 v{W+1}, 32, v{W}')
    if role != 0:
        rs, base, uo = (160, GU5, GU5U) if role == 1 else (192, GU6, GU6U)
        G = W + (1 if role == 2 else 0)
        e(f'v_mul_u32_u24 v{V}, {rs}, v{V}'); e(f'v_mul_u32_u24 v{V+2}, {uo}, v{V+2}')
        e(f'v_add3_u32 v{V}, v{V}, v{V+1}, v{V+2}')
        if role == 1:
            e(f'v_add_u32 v{G+1}, {base + 128}, v{V}')
            e(f's_lshl_b32 s{T}, s{K.sCG}, 6'); e(f's_add_u32 s{T}, s{T}, {base}'); e(f'v_add_u32 v{G}, s{T}, v{V}')
        else:
            e(f's_lshl_b32 s{T}, s{K.sCG}, {5 if role == 2 else 6}'); e(f's_add_u32 s{T}, s{T}, {base + (0 if role == 2 else 64)}')
            e(f'v_add_u32 v{G}, s{T}, v{V}'); e(f'v_add_u32 v{G+1}, {2*GU6S}, v{G}')

def k1_reads(e, K, role, n):
    c, s = n >> 2, n & 3; sl = c % 3; b = n & 1
    W = K.vWA
    L = []
    xr = lambda i: f'ds_read_b128 {vr(K.XF + b*8 + i*4, 4)}, v{K.vXA + s + 4*i} offset:{sl*XS}'
    def wr(i, v, off, rs):
        return [f'ds_read_b64_tr_b16 {vr(K.WF + b*12 + i*4 + 2*r, 2)}, v{v} offset:{off + (16*s + 4*r)*rs}' for r in range(2)]
    g6 = lambda G: (G + (sl == 2), (sl & 1) * GU6S)
    if role == 0: ws = [wr(0, W, sl*KVS, 128), wr(1, W+1, sl*KVS, 128)]
    elif role == 1: ws = [wr(0, W, sl*GU5S, 160), wr(1, W, sl*GU5S + 32, 160), wr(2, W+1, sl*GU5S, 160)]
    elif role == 2: ws = [wr(0, W, sl*QS, 128), wr(1, *g6(W+1), 192)]
    else:
        v, o = g6(W); ws = [wr(0, v, o, 192), wr(1, v, o + 32, 192)]
    L = [xr(0)] + ws[0] + [xr(1)] + sum(ws[1:], [])
    return L

def units(role):
    u = [(0, 0), (0, 1), (1, 1), (1, 0)]
    if role == 1: u = u + [(2, 0)]
    return u

def k1_main(e, K, role):
    for c in range(3):
        for f in k1_dma(e, K, role, c): f()
    if role in (0, 2): k1_phi_load(e, K)
    k1_read_setup(e, K, role)
    e.wait_tag('c0'); e('s_barrier')
    for t in k1_reads(e, K, role, 0): e(t)
    for n in range(32):
        c, s = n >> 2, n & 3; b = n & 1
        dm = []
        if s == 3 and c < 7:
            e.wait_tag(f'c{c+1}', lg=0); e('s_barrier')
            if c + 3 < 8: dm = k1_dma(e, K, role, c + 3)
        if n + 1 < 32:
            for t in k1_reads(e, K, role, n + 1): e(t)
        U = units(role)
        for i, (w, x) in enumerate(U):
            acc = vr(K.ACC + 16*i, 16)
            e(f'{MF} {acc}, {vr(K.WF + b*12 + w*4, 4)}, {vr(K.XF + b*8 + x*4, 4)}, {acc if n else 0}')
            k = -(-len(dm) // (len(U) - i))
            for f in dm[:k]: f()
            dm = dm[k:]

def k1_phi_load(e, K):
    L, T, V = K.vL, K.sT, K.vT
    e(f'v_and_b32 v{V}, 24, v{L}'); e(f'v_and_b32 v{V+1}, 3, v{L}'); e(f'v_lshl_add_u32 v{V}, v{V+1}, 1, v{V}')
    e(f'v_and_b32 v{V+1}, 32, v{L}'); e(f'v_lshl_add_u32 v{V}, v{V+1}, 2, v{V}')
    e(f's_lshl_b32 s{T}, s{K.sG}, 11'); e(f's_lshl_b32 s{T+1}, s{K.sCG}, 10'); e(f's_add_u32 s{T}, s{T}, s{T+1}')
    for hd in range(2):
        for i in range(8):
            d = 8*(i >> 2) + (i & 3)
            e(f'buffer_load_ushort v{K.TP + 8*hd + i}, v{V}, s[{K.PH}:{K.PH+3}], s{T} offen offset:{hd*512 + d*32}', tag='ph')

def epi_phi_sign(e, K):
    V = K.vT
    e(f'v_and_b32 v{V}, 4, v{K.vL}'); e(f'v_cmp_ne_u32 vcc, 0, v{V}'); e(f'v_mov_b32 v{V}, 0x80008000'); e(f'v_cndmask_b32 v{V}, 0, v{V}, vcc')
    for i in range(8): e(f'v_lshl_or_b32 v{K.vPH+i}, v{K.TP+2*i+1}, 16, v{K.TP+2*i}')
    for i in range(8): e(f'v_xor_b32 v{K.vPH+i}, v{V}, v{K.vPH+i}')

def epi_gu(e, K, a, t, stile, add, xs):
    for j in range(8): e(f'v_mul_f32 v{t+j}, s{K.sNL2E}, v{a+j}')
    for j in range(8): e(f'v_exp_f32 v{t+j}, v{t+j}')
    for j in range(8): e(f'v_add_f32 v{t+j}, 1.0, v{t+j}')
    for j in range(8): e(f'v_rcp_f32 v{t+j}, v{t+j}')
    for j in range(8): e(f'v_mul_f32 v{t+j}, v{t+j}, v{a+8+j}')
    for j in range(4): e(f'v_cvt_pk_bf16_f32 v{a+j}, v{t+2*j}, v{t+2*j+1}')
    e(f's_add_u32 s{K.sT}, s{stile}, {add*65536}')
    e(f'buffer_store_dwordx4 {vr(a, 4)}, v{K.vST+xs}, s[{K.H}:{K.H+3}], s{K.sT} offen')

def epi_p(e, K, src, hd, p, t):
    for j in range(4): e(f'v_cvt_pk_bf16_f32 v{t+j}, v{src+2*j}, v{src+2*j+1}')
    e(f'{MF} {vr(p, 16)}, {vr(K.vPH + 4*hd, 4)}, {vr(t, 4)}, 0')

def epi_softmax(e, K, p, t, o):
    e(f'v_max3_f32 v{t}, v{p}, v{p+1}, v{p+2}'); e(f'v_max3_f32 v{t+1}, v{p+3}, v{p+4}, v{p+5}')
    for j in range(6, 16, 4):
        e(f'v_max3_f32 v{t}, v{t}, v{p+j}, v{p+j+1}')
        if j + 2 < 16: e(f'v_max3_f32 v{t+1}, v{t+1}, v{p+j+2}, v{p+j+3}')
    e(f'v_max_f32 v{t}, v{t}, v{t+1}'); e(f'v_mul_f32 v{t}, s{K.sNL2E}, v{t}')
    for j in range(16): e(f'v_fma_f32 v{p+j}, v{p+j}, s{K.sL2E}, v{t}')
    for j in range(16): e(f'v_exp_f32 v{p+j}, v{p+j}')
    e(f'v_add_f32 v{t}, v{p}, v{p+1}'); e(f'v_add_f32 v{t+1}, v{p+2}, v{p+3}')
    for j in range(4, 16, 2):
        e(f'v_add_f32 v{t}, v{t}, v{p+j}'); e(f'v_add_f32 v{t+1}, v{t+1}, v{p+j+1}')
    e(f'v_add_f32 v{t}, v{t}, v{t+1}'); e(f'v_rcp_f32 v{t}, v{t}')
    for j in range(16): e(f'v_mul_f32 v{p+j}, v{p+j}, v{t}')
    for j in range(8): e(f'v_cvt_pk_bf16_f32 v{o+j}, v{p+2*j}, v{p+2*j+1}')

def k1_epi(e, K, role):
    T, V, L, A, TP = K.sT, K.vT, K.vL, K.ACC, K.TP
    U = units(role)
    if role in (1, 3):
        e(f's_lshl_b32 s{T+1}, s{K.sCG}, 1'); e(f's_add_u32 s{T+1}, s{T+1}, s{K.sP}'); e(f's_lshl_b32 s{T+1}, s{T+1}, 16')
        e(f's_lshl_b32 s{T+2}, s{K.sP}, 16')
        for i, (w, x) in enumerate(U):
            if w < 2: epi_gu(e, K, A + 16*i, TP + 8*(i & 1), T+1, w + (2 if role == 3 else 0), x)
            else: epi_gu(e, K, A + 16*i, TP + 8*(i & 1), T+2, 4, x)
        if role == 1: e('s_barrier')
    elif role == 2:
        epi_phi_sign(e, K)
        for i in range(4): epi_p(e, K, A + 16*(i >> 1) + 8*(i & 1), i & 1, TP + 16*i, TP + 64 + 4*i)
        e(f's_add_u32 s{T+1}, s{K.sCG}, s{K.sP}'); e(f's_lshl_b32 s{T+1}, s{T+1}, 16')
        for i in (2, 3): epi_gu(e, K, A + 16*i, TP + 80 + 8*(i & 1), T+1, 0, U[i][1])
        e(f's_lshl_b32 s{T+1}, s{K.sG}, 19'); e(f's_lshl_b32 s{T+2}, s{K.sCG}, 18'); e(f's_add_u32 s{T+1}, s{T+1}, s{T+2}')
        for i in range(4):
            epi_softmax(e, K, TP + 16*i, V, A + 8*i)
            for s in range(2):
                e(f's_add_u32 s{T}, s{T+1}, {((i & 1)*2 + s)*65536}')
                e(f'buffer_store_dwordx4 {vr(A + 8*i + 4*s, 4)}, v{K.vST + (i >> 1)}, s[{K.PQ}:{K.PQ+3}], s{T} offen')
    else:
        epi_phi_sign(e, K)
        for i, (w, x) in enumerate(U): epi_p(e, K, A + 16*i, w, TP + 16*i, TP + 64 + 4*i)
        W = K.vWA
        e(f'v_and_b32 v{W}, 31, v{L}'); e(f'v_lshlrev_b32 v{W}, 6, v{W}'); e(f'v_lshrrev_b32 v{W+3}, 5, v{L}')
        e(f's_mul_i32 s{T}, s{K.sCG}, {49152 + 4096}'); e(f's_lshl_b32 s{T+1}, s{K.sTP}, 13'); e(f's_add_u32 s{T}, s{T}, s{T+1}')
        e(f'v_add_u32 v{W}, s{T}, v{W}')
        X = K.vXA
        e(f'v_lshl_add_u32 v{X}, v{W+3}, 5, v{W}'); e(f'v_xor_b32 v{X+1}, 4096, v{X}')
        e(f'v_lshl_add_u32 v{X+2}, v{W+3}, 3, v{W}'); e(f'v_xor_b32 v{X+3}, 4096, v{X+2}')
        e(f'v_lshl_add_u32 v{X+4}, v{W+3}, 4, v{W}'); e(f'v_xor_b32 v{X+5}, 4096, v{X+4}')
        O = TP + 80
        for j in range(4): e(f'v_mov_b32 v{O+j}, 0x3f803f80')
        for i, (w, x) in enumerate(U):
            a = A + 16*i
            for j in range(4): e(f'v_cvt_pk_bf16_f32 v{a+8+j}, v{a+8+2*j}, v{a+9+2*j}')
            e(f'ds_write_b64 v{X+2+x}, {vr(a+8, 2)} offset:{w*32768 + 2048}')
            e(f'ds_write_b64 v{X+2+x}, {vr(a+10, 2)} offset:{w*32768 + 2048 + 16}')
            e(f'ds_write_b128 v{X+4+x}, {vr(O, 4)} offset:{w*32768 + 2048 + 32}')
        for i, (w, x) in enumerate(U):
            a = A + 16*i
            epi_softmax(e, K, TP + 16*i, V, a)
            e(f'ds_write_b128 v{X+x}, {vr(a, 4)} offset:{w*32768}')
            e(f'ds_write_b128 v{X+x}, {vr(a+4, 4)} offset:{w*32768 + 16}')
        e(f'v_bfe_u32 v{V}, v{L}, 2, 2'); e(f'v_lshl_add_u32 v{V}, v{W+3}, 3, v{V}'); e(f'v_lshlrev_b32 v{V}, 6, v{V}')
        e(f'v_and_b32 v{V+1}, 16, v{L}'); e(f'v_lshl_add_u32 v{V}, v{V+1}, 1, v{V}')
        e(f'v_and_b32 v{V+1}, 3, v{L}'); e(f'v_lshl_add_u32 v{V}, v{V+1}, 3, v{V}')
        e(f's_mul_i32 s{T}, s{K.sCG}, 49152'); e(f's_lshl_b32 s{T+1}, s{K.sTP}, 15'); e(f's_add_u32 s{T}, s{T}, s{T+1}')
        e(f'v_add_u32 v{V}, s{T}, v{V}')
        e(f'v_and_b32 v{V+1}, 31, v{L}'); e(f'v_lshlrev_b32 v{V+1}, 2, v{V+1}'); e(f'v_lshl_add_u32 v{V+1}, v{W+3}, 9, v{V+1}')
        e(f's_lshl_b32 s{T}, s{K.sG}, 2'); e(f's_add_u32 s{T}, s{T}, s{K.sA}'); e(f's_lshl_b32 s{T}, s{T}, 12')
        e.waitcnt(lg=0); e('s_barrier')
        for k in range(8):
            for m in range(2):
                for r in range(2):
                    e(f'ds_read_b64_tr_b16 {vr(TP + 8*k + 4*m + 2*r, 2)}, v{V} offset:{(k >> 1)*4096 + m*2048 + ((k & 1)*16 + 4*r)*64}')
        for k in range(8):
            e(f'{MF} {vr(A, 16)}, {vr(TP + 8*k + 4, 4)}, {vr(TP + 8*k, 4)}, {vr(A, 16) if k else 0}')
        for j in range(8):
            e(f'buffer_atomic_add_f32 v{A+j}, v{V+1}, s[{K.KV}:{K.KV+3}], s{T} offen offset:{(8*(j >> 2) + (j & 3))*128}')
        e('s_mov_b32 exec_hi, 0')
        e(f'buffer_atomic_add_f32 v{A+8}, v{V+1}, s[{K.KV}:{K.KV+3}], s{T} offen offset:2048')

def gen_k1(name):
    K = K1; e = Stream(); k1_common(e, K, name)
    txt = e.text()
    for role in range(4):
        f = e.fork()
        if role: f.label(f'{name}_r{role}')
        k1_dma_setup(f, K, role); k1_main(f, K, role); k1_epi(f, K, role)
        if role == 3: f.label(f'{name}_end')
        f('s_endpgm')
        txt += f.text()
    return txt


from gen import P2, p2_setup, p2_tail
import gen
def gen_k2p(name):
    e = Stream(); P = P2
    gen.WS_O = WS_PQ
    e('s_cmp_ge_u32 s2, 256'); e(f's_cbranch_scc1 {name}_end')
    e('s_load_dwordx2 s[4:5], s[0:1], 0'); e('s_load_dwordx2 s[6:7], s[0:1], 24')
    e('s_load_dwordx4 s[8:11], s[0:1], 56'); e('s_load_dwordx2 s[12:13], s[0:1], 80')
    code_prefetch(e, name, name + '_end', 12)
    e(f'v_lshrrev_b32 v{P.vT0}, 6, v0'); e(f'v_and_b32 v{P.vLane}, 63, v0'); e(f'v_readfirstlane_b32 s{P.sW}, v{P.vT0}')
    KV = 56; vKV = 15
    srd(e, KV, 12, 13, 32*4096, WS_KV)
    e(f'v_and_b32 v{vKV}, 31, v{P.vLane}'); e(f'v_min_u32 v{vKV}, 16, v{vKV}'); e(f'v_lshlrev_b32 v{vKV}, 7, v{vKV}')
    e(f'v_and_b32 v{P.vT0}, 32, v{P.vLane}'); e(f'v_lshl_add_u32 v{vKV}, v{P.vT0}, 1, v{vKV}')
    e(f's_lshl_b32 s60, s{P.sW}, 14')
    R = 96
    kvr = lambda j: R + 16*j
    phi = lambda j: R + 64 + 16*j
    for j in range(4):
        if j: e(f's_add_u32 s60, s60, 4096')
        for q in range(4): e(f'buffer_load_dwordx4 {vr(kvr(j) + 4*q, 4)}, v{vKV}, s[{KV}:{KV+3}], s60 offen offset:{16*q}')
    p2_setup(e, P, 4, 6, 8, 10, 12)
    e(f's_mov_b32 s{P.O+2}, {64*65536}'); e(f's_lshl_b32 s{P.sT+5}, s{P.sW}, 19')
    def dma(i):
        srdn, base, k = (P.WD, P.sT+2, i - 4) if i >= 4 else (P.WO, P.sT+3, i)
        for hf in range(2):
            e(f's_add_u32 m0, s{P.sREG}, {(i % 10) * 2048 + hf * 1024}')
            e(f's_add_u32 s{P.sT}, s{base}, {k * 16384 + hf * 8192}')
            e(f'buffer_load_dwordx4 v{P.vDMA}, s[{srdn}:{srdn+3}], s{P.sT} offen lds', tag=f'w{i}')
    af = {}
    for j in range(4): af[j] = kvr(j) + 8
    for i in range(4, 8): af[i] = R + 128 + 8*(i - 4)
    for i in range(8, 15): af[i] = R + 64 + 8*(i - 8)
    def aload(i):
        e(f's_add_u32 s{P.sT}, s{P.sT+4}, {(i - 4) * 65536}')
        for mt in range(2):
            e(f'buffer_load_dwordx4 {vr(af[i] + mt*4, 4)}, v{P.vA}, s[{P.H}:{P.H+3}], s{P.sT} offen offset:{mt*1024}')
    for j in range(4):
        for s in range(2):
            e(f's_add_u32 s{P.sT}, s{P.sT+5}, {(2*j + s) * 65536}')
            for mt in range(2):
                e(f'buffer_load_dwordx4 {vr(phi(j) + mt*8 + s*4, 4)}, v{P.vA}, s[{P.O}:{P.O+3}], s{P.sT} offen offset:{mt*1024}')
    for i in range(4): dma(i)
    for i in range(4, 8): dma(i); aload(i)
    dma(8); dma(9)
    e(f'buffer_load_dwordx4 {vr(P.vX, 4)}, v{P.vXo}, s[{P.X}:{P.X+3}], 0 offen')
    def omf(j):
        for q in range(8): e(f'v_cvt_pk_bf16_f32 v{kvr(j) + q}, v{kvr(j) + 2*q}, v{kvr(j) + 2*q + 1}')
        for mt in range(2):
            c = vr(P.ACC + 32*(j & 1) + 16*mt, 16)
            for s in range(2): e(f'{MF} {c}, {vr(kvr(j) + 4*s, 4)}, {vr(phi(j) + mt*8 + s*4, 4)}, {c if s else 0}')
    def ofin(j):
        for mt in range(2):
            c = P.ACC + 32*(j & 1) + 16*mt
            e(f'v_add_f32 v{c+8}, 0x358637bd, v{c+8}'); e(f'v_rcp_f32 v{c+8}, v{c+8}')
        for mt in range(2):
            c = P.ACC + 32*(j & 1) + 16*mt
            for q in range(8): e(f'v_mul_f32 v{c+q}, v{c+q}, v{c+8}')
            for q in range(4): e(f'v_cvt_pk_bf16_f32 v{af[j] + 4*mt + q}, v{c+2*q}, v{c+2*q+1}')
    omf(0)
    for j in range(4):
        if j < 3: omf(j + 1)
        ofin(j)
        aload(8 + 2*j)
        if j < 3: aload(9 + 2*j)
    def wread(i):
        b = P.WF + (i & 1) * 8
        e.wait_tag(f'w{i}')
        for nt in range(2):
            for r in range(2):
                e(f'ds_read_b64_tr_b16 {vr(b + nt*4 + r*2, 2)}, v{P.vT0 + nt} offset:{(i % 10) * 2048 + r * 1024}', tag=f'r{i}')
    wread(0)
    for i in range(15):
        if i + 1 < 15: wread(i + 1)
        if i < 5:
            e.wait_lg_tag(f'r{i}'); dma(i + 10)
        b = P.WF + (i & 1) * 8
        for nt in range(2):
            for mt in range(2):
                acc = vr(P.ACC + (mt*2 + nt) * 16, 16)
                e(f'{MF} {acc}, {vr(af[i] + mt*4, 4)}, {vr(b + nt*4, 4)}, {acc if i else 0}')
    p2_tail(e, P)
    e.label(f'{name}_end'); e('s_endpgm')
    return e.text()

def full():
    return wrap([('k0_kernel', gen_k0('k0_kernel'), 512, 0), ('k1_kernel', gen_k1('k1_kernel'), 512, 163840), ('k2_kernel', gen_k2p('k2_kernel'), 512, 163840)])
if __name__ == '__main__':
    open('v1.s', 'w').write(full())
```

```python
import re, copy

def regs_of(tok):
    tok = tok.strip()
    neg = tok.lstrip('-').strip('|')
    m = re.fullmatch(r'([vsa])(\d+)', neg)
    if m: return [(m.group(1), int(m.group(2)))]
    m = re.fullmatch(r'([vsa])\[(\d+):(\d+)\]', neg)
    if m: return [(m.group(1), i) for i in range(int(m.group(2)), int(m.group(3)) + 1)]
    if neg == 'vcc': return [('vcc', 0)]
    if neg == 'exec': return [('exec', 0)]
    if neg == 'm0': return [('m0', 0)]
    return []

TRANS = ('v_exp_f32', 'v_log_f32', 'v_rcp_f32', 'v_rsq_f32', 'v_sqrt_f32')

class Ins:
    __slots__ = ('text', 'op', 'dst', 'src', 'cls', 'A', 'B', 'C', 'passes', 'lds', 'wide', 'dpp', 'states')
    def __init__(self, text):
        self.text = text
        t = text.split(';')[0].strip()
        parts = t.split(None, 1)
        op = parts[0]; self.op = op
        rest = parts[1] if len(parts) > 1 else ''
        ops = [o.strip() for o in rest.split(',')] if rest else []
        mods = ''
        if ops:
            last = ops[-1].split(None, 1)
            ops[-1] = last[0]
            mods = last[1] if len(last) > 1 else ''
        R = [regs_of(o) for o in ops]
        self.A = self.B = self.C = (); self.passes = 0; self.lds = False; self.wide = False
        self.dpp = ('row_' in mods or 'quad_perm' in mods or op.endswith('_dpp'))
        self.states = 1
        flat = lambda L: [r for x in L for r in x]
        if op.startswith('v_mfma'):
            self.cls = 'mfma'; self.dst = R[0]; self.A, self.B, self.C = R[1], R[2], R[3]
            self.src = flat(R[1:]); self.passes = 8 if '32x32x16' in op else 4
        elif op.startswith('v_'):
            self.cls = 'trans' if op.replace('_e32', '').replace('_e64', '') in TRANS else 'valu'
            if op.startswith('v_permlane') and 'swap' in op:
                self.dst = flat(R); self.src = flat(R)
            elif '_co_' in op:
                self.dst = R[0] + R[1]; self.src = flat(R[2:])
            else:
                self.dst = R[0] if R else []; self.src = flat(R[1:])
                if op.startswith(('v_fmac', 'v_dot2c', 'v_mac', 'v_pk_fmac')) or self.dpp: self.src = self.src + R[0]
                if op.startswith('v_cndmask') and len(ops) == 3: self.src = self.src + [('vcc', 0)]
        elif op.startswith('ds_'):
            self.cls = 'ds'
            if op.startswith(('ds_read', 'ds_bpermute', 'ds_swizzle', 'ds_permute')):
                self.dst = R[0]; self.src = flat(R[1:])
            else:
                self.dst = []; self.src = flat(R)
            if 'addtid' in op: self.lds = True
        elif op.startswith(('buffer_', 'global_')):
            self.cls = 'vmem'
            islds = (' lds' in ' ' + mods) or ('_lds_' in op)
            self.lds = islds
            if 'load' in op and not islds:
                self.dst = R[0]; self.src = flat(R[1:])
            elif 'atomic' in op and 'sc0' in mods:
                self.dst = R[0]; self.src = flat(R[1:]) if op.startswith('global_') else flat(R)
            else:
                self.dst = []; self.src = flat(R)
            if 'store' in op and ('x3' in op or 'x4' in op):
                self.wide = True
                self.C = R[0] if op.startswith('buffer_') else R[1]
        elif op.startswith(('s_load', 's_buffer_load', 's_memtime', 's_memrealtime')):
            self.cls = 'smem'; self.dst = R[0]; self.src = flat(R[1:])
        else:
            self.cls = 'salu'
            if op.startswith(('s_cmp', 's_waitcnt', 's_cbranch', 's_branch', 's_barrier', 's_nop', 's_endpgm', 's_sleep', 's_setprio', 's_bitcmp', 's_setpc')):
                self.dst = []; self.src = flat(R)
            else:
                self.dst = R[0] if R else []; self.src = flat(R[1:])
                if 'saveexec' in op: self.dst = self.dst + [('exec', 0)]
            if op == 's_nop': self.states = int(ops[0]) + 1

def need(p, c):
    n = 0
    pv = p.cls in ('valu', 'trans'); cv = c.cls in ('valu', 'trans')
    pd = set(p.dst)
    if pv:
        vd = {r for r in pd if r[0] == 'v'}; sd = pd - vd
        cs = set(c.src)
        if c.cls == 'mfma' and vd & cs: n = max(n, 2)
        if p.cls == 'trans' and c.cls in ('valu', 'vmem', 'ds') and vd & cs: n = max(n, 1)
        if cv and (c.op.startswith('v_permlane') or c.dpp) and vd & cs: n = max(n, 2)
        if cv and c.op.startswith(('v_readlane', 'v_readfirstlane')) and vd & cs: n = max(n, 1)
        if sd & cs:
            if cv: n = max(n, 4 if c.op.startswith(('v_readlane', 'v_writelane')) else 2)
            if c.cls == 'vmem': n = max(n, 5)
        if ('exec', 0) in pd: n = max(n, 5)
        if p.op.startswith('v_dot') and vd & (cs | set(c.dst)) and not (c.op == p.op): n = max(n, 3)
        if ('sdwa' in p.text or 'op_sel' in p.text) and cv and vd & (cs | set(c.dst)): n = max(n, 1)
    if p.cls == 'mfma':
        big = p.passes == 8
        if c.cls == 'mfma':
            if pd & (set(c.A) | set(c.B)): n = max(n, 12 if big else 8)
            if pd & set(c.C):
                if not (list(p.dst) == list(c.C) and p.passes == c.passes): n = max(n, 10 if big else 6)
            elif pd & set(c.dst): n = max(n, 12 if big else 8)
        elif cv or c.cls in ('ds', 'vmem'):
            if pd & (set(c.src) | set(c.dst)): n = max(n, 12 if big else 8)
            if set(p.C) & set(c.dst): n = max(n, 7 if big else 3)
    if p.cls == 'salu' and ('m0', 0) in pd and c.lds: n = max(n, 1)
    if p.wide and set(p.C) & set(c.dst): n = max(n, 2)
    return n

class Stream:
    def __init__(self):
        self.out = []
        self.hist = []
        self.vm = []
        self.lg = []
        self.smem = False
        self.nnop = 0
    def fork(self):
        s = Stream(); s.hist = list(self.hist); s.vm = list(self.vm); s.lg = list(self.lg); s.smem = self.smem
        return s
    def raw(self, text): self.out.append(text)
    def label(self, name): self.out.append(name + ':')
    def comment(self, t): self.out.append('  ; ' + t)
    def _emit(self, ins):
        d = 0; req = 0
        for p in reversed(self.hist):
            r = need(p, ins) - d
            if r > req: req = r
            d += p.states
            if d >= 12: break
        while req > 0:
            k = min(req, 16)
            nop = Ins(f's_nop {k-1}'); self.hist.append(nop); self.out.append('  ' + nop.text); req -= k; self.nnop += 1
        self.hist.append(ins); self.hist = self.hist[-14:]
        self.out.append('  ' + ins.text)
    def waitcnt(self, vm=None, lg=None):
        parts = []
        if vm is not None and vm < len(self.vm):
            vm = min(vm, 63); parts.append(f'vmcnt({vm})'); self.vm = self.vm[len(self.vm) - vm:] if vm else []
        if lg is not None and (lg < len(self.lg) or (lg == 0 and self.smem)):
            if self.smem: lg = 0
            lg = min(lg, 15); parts.append(f'lgkmcnt({lg})'); self.lg = self.lg[len(self.lg) - lg:] if lg else []
            if lg == 0: self.smem = False
        if parts: self._emit(Ins('s_waitcnt ' + ' '.join(parts)))
    def _pos(self, q, pred):
        last = -1
        for i, e in enumerate(q):
            if pred(e): last = i
        return None if last < 0 else len(q) - 1 - last
    def wait_tag(self, tag, lg=None):
        self.waitcnt(vm=self._pos(self.vm, lambda e: e[1] == tag), lg=lg)
    def wait_lg_tag(self, tag):
        self.waitcnt(lg=self._pos(self.lg, lambda e: e[1] == tag))
    def __call__(self, text, tag=None):
        ins = Ins(text)
        touch = set(ins.src) | set(ins.dst)
        v = self._pos(self.vm, lambda e: e[0] & touch)
        l = self._pos(self.lg, lambda e: e[0] & touch)
        if v is not None or l is not None: self.waitcnt(vm=v, lg=l)
        self._emit(ins)
        if ins.cls == 'vmem': self.vm.append((set(ins.dst), tag))
        elif ins.cls == 'ds': self.lg.append((set(ins.dst), tag))
        elif ins.cls == 'smem':
            self.lg.append((set(ins.dst), tag)); self.smem = True
    TS = False; TSB = 68
    def stamp(self, i):
        if Stream.TS: self(f's_mem{"" if Stream.TS == 2 else "real"}time s[{self.TSB+2*i}:{self.TSB+2*i+1}]')
    def stamp_flush(self, n, wsl, sw, off, v=250):
        if not Stream.TS: return
        self('s_mov_b64 exec, -1')
        self.waitcnt(vm=0); self.stamp(n - 1); self.waitcnt(lg=0)
        for i in range(n): self(f'v_writelane_b32 v{v}, s{self.TSB+2*i}, {i}')
        self(f's_add_u32 s{self.TSB}, s{wsl}, {off:#x}'); self(f's_addc_u32 s{self.TSB+1}, s{wsl+1}, 0')
        self(f's_mov_b32 s{self.TSB+2}, 0x20000'); self(f's_mov_b32 s{self.TSB+3}, 0x20000')
        self(f's_lshl_b32 s{self.TSB+4}, s2, 3'); self(f's_add_u32 s{self.TSB+4}, s{self.TSB+4}, s{sw}'); self(f's_lshl_b32 s{self.TSB+4}, s{self.TSB+4}, 6')
        self(f'v_and_b32 v{v+1}, 63, v0'); self(f'v_lshlrev_b32 v{v+1}, 2, v{v+1}')
        self('s_mov_b64 exec, 0xffff')
        self(f'buffer_store_dword v{v}, v{v+1}, s[{self.TSB}:{self.TSB+3}], s{self.TSB+4} offen')
    def lines(self, block):
        for l in block.strip().split('\n'):
            l = l.strip()
            if not l or l.startswith(';'): continue
            if l.endswith(':'): self.label(l[:-1])
            else: self(l)
    def text(self): return '\n'.join(self.out) + '\n'

def vr(a, n=1): return f'v{a}' if n == 1 else f'v[{a}:{a+n-1}]'
def sr(a, n=1): return f's{a}' if n == 1 else f's[{a}:{a+n-1}]'

def kernel_desc(name, vgpr=256, sgpr=102):
    return f""".amdhsa_kernel {name}
  .amdhsa_next_free_vgpr {vgpr}
  .amdhsa_next_free_sgpr {sgpr}
  .amdhsa_accum_offset {(vgpr+3)//4*4}
  .amdhsa_group_segment_fixed_size 0
  .amdhsa_kernarg_size 88
  .amdhsa_user_sgpr_count 2
  .amdhsa_user_sgpr_kernarg_segment_ptr 1
  .amdhsa_system_sgpr_workgroup_id_x 1
.end_amdhsa_kernel
"""
```

```python
import sys; sys.path.insert(0, 'work')
from asmlib import *
from gen import NAME, MF, srd, code_prefetch, wrap
WS_H, WS_PQ, WS_KV, WS_XN = 0, 0x600000, 0xA00000, 0xB00000
LOG2E = 0x3fb8aa3b

def wave_sum(e, v):
    for d in ('row_shr:1', 'row_shr:2', 'row_shr:4', 'row_shr:8'):
        e(f'v_add_f32_dpp v{v}, v{v}, v{v} {d} row_mask:0xf bank_mask:0xf bound_ctrl:0')
    e(f'v_add_f32_dpp v{v}, v{v}, v{v} row_bcast:15 row_mask:0xa bank_mask:0xf')
    e(f'v_add_f32_dpp v{v}, v{v}, v{v} row_bcast:31 row_mask:0xc bank_mask:0xf')

def gen_k0(name):
    e = Stream()
    e('s_cmp_ge_u32 s2, 256'); e(f's_cbranch_scc1 {name}_end')
    e.stamp(0)
    e('s_load_dwordx2 s[4:5], s[0:1], 0'); e('s_load_dwordx2 s[6:7], s[0:1], 80')
    e('s_lshl_b32 s3, s2, 13'); e('v_lshlrev_b32 v1, 4, v0'); e('v_add_u32 v2, s3, v1')
    srd(e, 8, 4, 5, 2048*1024); srd(e, 12, 6, 7, 2048*1024, WS_XN); srd(e, 16, 6, 7, 32*4096, WS_KV)
    e('buffer_load_dwordx4 v[4:7], v2, s[8:11], 0 offen')
    e('v_mov_b32 v20, 0'); e('v_lshlrev_b32 v3, 2, v0'); e('s_lshl_b32 s3, s2, 9')
    e('v_cmp_gt_u32 vcc, 128, v0'); e('s_and_saveexec_b64 s[20:21], vcc')
    e('buffer_store_dword v20, v3, s[16:19], s3 offen')
    e('s_mov_b64 exec, s[20:21]')
    for q in range(4):
        e(f'v_lshlrev_b32 v{8+2*q}, 16, v{4+q}'); e(f'v_and_b32 v{9+2*q}, 0xffff0000, v{4+q}')
    e('v_add_f32 v16, v8, v9')
    for q in range(2, 8): e(f'v_add_f32 v16, v16, v{8+q}')
    wave_sum(e, 16)
    e('v_readlane_b32 s22, v16, 63')
    e('v_mov_b32 v17, 0x3b000000'); e('v_mul_f32 v17, s22, v17')
    e('v_sub_f32 v18, v8, v17'); e('v_mul_f32 v16, v18, v18')
    for q in range(1, 8):
        e(f'v_sub_f32 v18, v{8+q}, v17'); e('v_fmac_f32 v16, v18, v18')
    wave_sum(e, 16)
    e('v_readlane_b32 s22, v16, 63')
    e('v_mov_b32 v16, 0x3b000000'); e('v_mul_f32 v16, s22, v16')
    e('v_cvt_pk_bf16_f32 v16, v16, v17')
    e('v_and_b32 v17, 0xffff0000, v16'); e('v_lshlrev_b32 v16, 16, v16')
    e('v_add_f32 v16, 0x3727c5ac, v16')
    e('v_cvt_pk_bf16_f32 v16, v16, v16'); e('v_lshlrev_b32 v16, 16, v16')
    e('v_sqrt_f32 v16, v16')
    e('v_cvt_pk_bf16_f32 v16, v16, v16'); e('v_lshlrev_b32 v16, 16, v16')
    e('v_rcp_f32 v16, v16')
    for q in range(8): e(f'v_sub_f32 v{8+q}, v{8+q}, v17')
    for q in range(4):
        e(f'v_cvt_pk_bf16_f32 v{4+q}, v{8+2*q}, v{9+2*q}')
    for q in range(4):
        e(f'v_lshlrev_b32 v{8+2*q}, 16, v{4+q}'); e(f'v_and_b32 v{9+2*q}, 0xffff0000, v{4+q}')
    for q in range(8): e(f'v_mul_f32 v{8+q}, v{8+q}, v16')
    for q in range(4):
        e(f'v_cvt_pk_bf16_f32 v{4+q}, v{8+2*q}, v{9+2*q}')
    e('buffer_store_dwordx4 v[4:7], v2, s[12:15], 0 offen')
    e.stamp(1); e('v_lshrrev_b32 v21, 6, v0'); e('v_readfirstlane_b32 s23, v21'); e.stamp_flush(3, 6, 23, 0xE40000)
    e.label(f'{name}_end'); e('s_endpgm')
    return e.text()

class K1:
    sW, sR, sG, sTP, sCG, sCH, sP, sA = 20, 21, 22, 23, 24, 25, 26, 27
    X, WQ, GU, PH, H, PQ, KV = 28, 32, 36, 40, 44, 48, 52
    sT = 56
    sL2E, sNL2E = 64, 65
    sLD = 66
    sLD2 = 67
    vL = 1
    vD = 2
    vXA = 8
    vWA = 16
    vT = 20
    vST = 24
    vPH = 32
    XF = 40
    WF = 56
    ACC = 80
    TP = 160
XS = 16384
KVB, KVS = 49152, 16384
GU5, GU5S, GU5U = 98304, 20736, 10240 + 128
QB, QS = 49152, 8192
GU6, GU6S, GU6U = 73728, 24640, 12288 + 32

def k1_common(e, K, name):
    e('s_cmp_ge_u32 s2, 256'); e(f's_cbranch_scc1 {name}_end')
    e.stamp(0)
    e('s_load_dwordx4 s[4:7], s[0:1], 8'); e('s_load_dwordx4 s[8:11], s[0:1], 40'); e('s_load_dwordx2 s[12:13], s[0:1], 80')
    code_prefetch(e, name, name + '_end', 240)
    T = K.sT
    e(f'v_lshrrev_b32 v{K.vT}, 6, v0'); e(f'v_and_b32 v{K.vL}, 63, v0'); e(f'v_readfirstlane_b32 s{K.sW}, v{K.vT}')
    e(f's_and_b32 s{T}, s2, 7'); e(f's_lshr_b32 s{T+1}, s2, 3')
    e(f's_and_b32 s{K.sR}, s{T}, 1'); e(f's_lshl_b32 s{K.sR}, s{K.sR}, 3'); e(f's_and_b32 s{T+2}, s{T+1}, 7'); e(f's_add_u32 s{K.sR}, s{K.sR}, s{T+2}')
    e(f's_lshr_b32 s{T+1}, s{T+1}, 3')
    if OPT['rot'] == 1: e(f's_lshl_b32 s{K.sCH}, s{T+1}, 1'); e(f's_add_u32 s{K.sCH}, s{K.sCH}, s{K.sR}'); e(f's_and_b32 s{K.sCH}, s{K.sCH}, 7')
    elif OPT['rot'] == 2: e(f's_lshr_b32 s{K.sCH}, s{K.sR}, 3'); e(f's_lshl_b32 s{K.sCH}, s{K.sCH}, 2')
    elif OPT['rot'] == 4: e(f's_lshr_b32 s{K.sCH}, s{K.sR}, 2'); e(f's_lshl_b32 s{K.sCH}, s{K.sCH}, 1')
    else: e(f's_mov_b32 s{K.sCH}, 0')
    e(f's_and_b32 s{K.sG}, s{T}, 6'); e(f's_lshr_b32 s{T+2}, s{T+1}, 1'); e(f's_add_u32 s{K.sG}, s{K.sG}, s{T+2}')
    e(f's_and_b32 s{T+3}, s{T+1}, 1')
    e(f's_mul_i32 s{K.sP}, s{K.sG}, 11'); e(f's_min_u32 s{K.sP}, s{K.sP}, 75')
    e(f's_and_b32 s{T+2}, s{K.sP}, 1'); e(f's_sub_u32 s{T+4}, 6, s{T+3}')
    e(f's_cmp_eq_u32 s{T+2}, s{T+3}'); e(f's_cselect_b32 s{T+4}, s{T+4}, 0'); e(f's_add_u32 s{K.sP}, s{K.sP}, s{T+4}')
    e(f's_and_b32 s{K.sTP}, s{K.sW}, 1'); e(f's_bfe_u32 s{K.sCG}, s{K.sW}, 0x10001'); e(f's_and_b32 s{K.sA}, s{K.sW}, 3')
    e(f's_mov_b32 s{K.sL2E}, {LOG2E:#x}'); e(f's_mov_b32 s{K.sNL2E}, {LOG2E | 0x80000000:#x}')
    srd(e, K.X, 12, 13, 2048*1024, WS_XN); srd(e, K.WQ, 4, 5, 512*3072)
    e(f's_cmp_eq_u32 s{K.sCG}, 0'); e(f's_cselect_b32 s8, s8, s10'); e(f's_cselect_b32 s9, s9, s11')
    srd(e, K.GU, 8, 9, 512*2752); srd(e, K.PH, 6, 7, 32*512)
    srd(e, K.H, 12, 13, 86*65536, WS_H); srd(e, K.PQ, 12, 13, 64*65536, WS_PQ); srd(e, K.KV, 12, 13, 32*4096, WS_KV)
    e(f's_lshr_b32 s{T+2}, s{K.sW}, 2'); e(f's_lshl_b32 s{T+3}, s{T+3}, 1'); e(f's_add_u32 s{T+2}, s{T+2}, s{T+3}')
    e(f's_cmp_eq_u32 s{T+2}, 1'); e(f's_cbranch_scc1 {name}_r1')
    e(f's_cmp_eq_u32 s{T+2}, 2'); e(f's_cbranch_scc1 {name}_r2')
    e(f's_cmp_eq_u32 s{T+2}, 3'); e(f's_cbranch_scc1 {name}_r3')

def k1_dma_setup(e, K, role):
    L, T, V = K.vL, K.sT, K.vT
    if role in (0, 2):
        e(f'v_lshrrev_b32 v{V}, 3, v{L}'); e(f'v_and_b32 v{V+1}, 7, v{L}')
        e(f'v_lshrrev_b32 v{V+2}, 4, v{L}'); e(f's_lshl_b32 s{T}, s{K.sTP}, 2'); e(f'v_add_u32 v{V+2}, s{T}, v{V+2}')
        e(f'v_xor_b32 v{V+2}, v{V+2}, v{V+1}'); e(f'v_lshlrev_b32 v{V+2}, 4, v{V+2}')
        e(f'v_lshl_add_u32 v{K.vD}, v{V}, 10, v{V+2}')
        e(f's_lshl_b32 s{T}, s{K.sR}, 17'); e(f's_lshl_b32 s{T+1}, s{K.sA}, 13'); e(f's_add_u32 s{T}, s{T}, s{T+1}')
        e(f'v_add_u32 v{K.vD}, s{T}, v{K.vD}')
        e(f'v_lshlrev_b32 v{V+2}, 1, v{V}'); e(f'v_and_b32 v{V+2}, 4, v{V+2}'); e(f'v_xor_b32 v{V+2}, v{V+2}, v{V+1}')
        e(f'v_lshlrev_b32 v{V+2}, 4, v{V+2}'); e(f'v_mul_u32_u24 v{V}, 3072, v{V}'); e(f'v_add_u32 v{V+2}, v{V+2}, v{V}')
        e(f's_mul_i32 s{T}, s{K.sA}, {8*3072}'); e(f's_lshl_b32 s{T+1}, s{K.sG}, 7'); e(f's_add_u32 s{T}, s{T}, s{T+1}')
        if role == 0: e(f's_add_u32 s{T}, s{T}, 1024')
        e(f'v_add_u32 v{K.vD+1}, s{T}, v{V+2}')
        if role == 0:
            e(f'v_xor_b32 v{K.vD+2}, 32, v{K.vD+1}'); e(f'v_add_u32 v{K.vD+2}, 1024, v{K.vD+2}')
        e(f's_lshl_b32 s{K.sLD}, s{K.sA}, 10')
    else:
        n, mul, npat = (10, 6554, 5) if role == 1 else (12, 5462, 3)
        e(f's_mul_i32 s{T}, s{K.sTP}, {32*2752}'); e(f's_lshl_b32 s{T+1}, s{K.sP}, 5'); e(f's_add_u32 s{T}, s{T}, s{T+1}')
        for p in range(npat):
            e(f'v_add_u32 v{V}, {64*p}, v{L}'); e(f'v_mul_u32_u24 v{V+1}, {mul}, v{V}'); e(f'v_lshrrev_b32 v{V+1}, 16, v{V+1}')
            e(f'v_mul_u32_u24 v{V+1}, {2752 - 16*n}, v{V+1}'); e(f'v_lshl_add_u32 v{V+1}, v{V}, 4, v{V+1}')
            e(f'v_add_u32 v{K.vD+p}, s{T}, v{V+1}')
        base, uo = (GU5, GU5U) if role == 1 else (GU6, GU6U)
        e(f's_mul_i32 s{K.sLD}, s{K.sCG}, {uo}'); e(f's_mul_i32 s{T}, s{K.sTP}, {32*16*n}')
        e(f's_add_u32 s{K.sLD}, s{K.sLD}, s{T}'); e(f's_add_u32 s{K.sLD}, s{K.sLD}, {base}')

def k1_dma(e, K, role, c):
    T = K.sT; s = c % 3; out = []
    def pre():
        e(f's_add_u32 s{T+4}, s{K.sCH}, {c}'); e(f's_and_b32 s{T+4}, s{T+4}, 7')
        if role in (0, 2):
            e(f's_lshl_b32 s{T+5}, s{T+4}, 7'); e(f's_mul_i32 s{T+4}, s{T+4}, {64*3072}')
        else: e(f's_mul_i32 s{T+4}, s{T+4}, {64*2752}')
    def mk(v, srdn, sb, add, lds, first):
        def f():
            if first: pre()
            e(f's_add_u32 m0, s{K.sLD}, {lds}')
            if add: e(f's_add_u32 s{T}, s{sb}, {add}'); so = T
            else: so = sb
            e(f'buffer_load_dwordx4 v{v}, s[{srdn}:{srdn+3}], s{so} offen lds', tag=f'c{c}')
        return f
    L = []
    if role in (0, 2):
        for q in range(4): L.append((K.vD, K.X, T+5, q*32768, s*XS + q*4096))
        for q in range(2):
            if role == 0:
                L.append((K.vD+1, K.WQ, T+4, q*32*3072, KVB + s*KVS + q*4096))
                L.append((K.vD+2, K.WQ, T+4, q*32*3072, KVB + s*KVS + 8192 + q*4096))
            else: L.append((K.vD+1, K.WQ, T+4, q*32*3072, QB + s*QS + q*4096))
    elif role == 1:
        for p in range(5): L.append((K.vD+p, K.GU, T+4, 0, s*GU5S + p*1024))
    else:
        for q in range(2):
            for p in range(3): L.append((K.vD+p, K.GU, T+4, q*16*2752, s*GU6S + q*3072 + p*1024))
    return [mk(*a, i == 0) for i, a in enumerate(L)]

def k1_read_setup(e, K, role):
    L, T, V = K.vL, K.sT, K.vT
    e(f'v_and_b32 v{V}, 31, v{L}'); e(f'v_bfe_u32 v{V+1}, v{L}, 1, 3'); e(f'v_lshrrev_b32 v{V+2}, 5, v{L}')
    e(f'v_xor_b32 v{V+1}, v{V+1}, v{V+2}'); e(f'v_lshlrev_b32 v{V+1}, 4, v{V+1}'); e(f'v_lshl_add_u32 v{V+1}, v{V}, 7, v{V+1}')
    e(f's_lshl_b32 s{T}, s{K.sTP}, 1'); e(f's_add_u32 s{T}, s{T}, s{K.sCG}'); e(f's_lshl_b32 s{T+1}, s{T}, 12')
    e(f'v_add_u32 v{K.vXA}, s{T+1}, v{V+1}')
    for i in range(1, 8): e(f'v_xor_b32 v{K.vXA+i}, {(i & 3)*32 + (i >> 2)*4096}, v{K.vXA}')
    e(f's_lshl_b32 s{T+1}, s{K.sR}, 2'); e(f's_add_u32 s{T}, s{T}, s{T+1}'); e(f's_lshl_b32 s{T}, s{T}, 10')
    e(f'v_lshlrev_b32 v{K.vST}, 4, v{L}'); e(f'v_add_u32 v{K.vST}, s{T}, v{K.vST}'); e(f'v_xor_b32 v{K.vST+1}, 1024, v{K.vST}')
    e(f'v_bfe_u32 v{V}, v{L}, 2, 2'); e(f'v_lshl_add_u32 v{V}, v{V+2}, 3, v{V}')
    e(f'v_and_b32 v{V+1}, 3, v{L}'); e(f'v_lshlrev_b32 v{V+1}, 3, v{V+1}')
    e(f'v_bfe_u32 v{V+2}, v{L}, 4, 1')
    W = K.vWA
    if role in (0, 2):
        e(f'v_lshl_add_u32 v{W}, v{V}, 7, v{V+1}')
        e(f'v_and_b32 v{V+3}, 8, v{L}'); e(f'v_lshl_add_u32 v{W}, v{V+3}, 3, v{W}'); e(f'v_lshl_add_u32 v{W}, v{V+2}, 5, v{W}')
        e(f's_lshl_b32 s{T}, s{K.sCG}, 6'); e(f'v_xor_b32 v{W}, s{T}, v{W}')
        e(f'v_add_u32 v{W}, {KVB}, v{W}')
        if role == 0:
            e(f'v_lshl_add_u32 v{W}, v{V+2}, 13, v{W}'); e(f'v_xor_b32 v{W+1}, 32, v{W}')
    if role != 0:
        rs, base, uo = (160, GU5, GU5U) if role == 1 else (192, GU6, GU6U)
        G = W + (1 if role == 2 else 0)
        e(f'v_mul_u32_u24 v{V}, {rs}, v{V}'); e(f'v_mul_u32_u24 v{V+2}, {uo}, v{V+2}')
        e(f'v_add3_u32 v{V}, v{V}, v{V+1}, v{V+2}')
        if role == 1:
            e(f'v_add_u32 v{G+1}, {base + 128}, v{V}')
            e(f's_lshl_b32 s{T}, s{K.sCG}, 6'); e(f's_add_u32 s{T}, s{T}, {base}'); e(f'v_add_u32 v{G}, s{T}, v{V}')
        else:
            e(f's_lshl_b32 s{T}, s{K.sCG}, {5 if role == 2 else 6}'); e(f's_add_u32 s{T}, s{T}, {base + (0 if role == 2 else 64)}')
            e(f'v_add_u32 v{G}, s{T}, v{V}'); e(f'v_add_u32 v{G+1}, {2*GU6S}, v{G}')

def k1_reads(e, K, role, n):
    c, s = n >> 2, n & 3; sl = c % 3; b = n & 1
    W = K.vWA
    L = []
    xr = lambda i: f'ds_read_b128 {vr(K.XF + b*8 + i*4, 4)}, v{K.vXA + s + 4*i} offset:{sl*XS}'
    def wr(i, v, off, rs):
        return [f'ds_read_b64_tr_b16 {vr(K.WF + b*12 + i*4 + 2*r, 2)}, v{v} offset:{off + (16*s + 4*r)*rs}' for r in range(2)]
    g6 = lambda G: (G + (sl == 2), (sl & 1) * GU6S)
    if role == 0: ws = [wr(0, W, sl*KVS, 128), wr(1, W+1, sl*KVS, 128)]
    elif role == 1: ws = [wr(0, W, sl*GU5S, 160), wr(1, W, sl*GU5S + 32, 160), wr(2, W+1, sl*GU5S, 160)]
    elif role == 2: ws = [wr(0, W, sl*QS, 128), wr(1, *g6(W+1), 192)]
    else:
        v, o = g6(W); ws = [wr(0, v, o, 192), wr(1, v, o + 32, 192)]
    L = [xr(0)] + ws[0] + [xr(1)] + sum(ws[1:], [])
    return L

def units(role):
    u = [(0, 0), (0, 1), (1, 1), (1, 0)]
    if role == 1: u = u + [(2, 0)]
    return u

OPT0 = dict(rot=0, pro=2, pre=1, spread=1, prio=0); OPT = dict(OPT0)
def k1_main(e, K, role):
    pro = OPT['pro']
    for c in range(pro):
        for f in k1_dma(e, K, role, c): f()
    k1_read_setup(e, K, role)
    e.stamp(1); e.wait_tag('c0'); e('s_barrier'); e.stamp(2)
    for t in k1_reads(e, K, role, 0): e(t)
    dm = sum([k1_dma(e, K, role, c) for c in range(pro, 3)], [])
    if OPT['prio'] and (role & 1): e('s_setprio 1')
    U = units(role)
    for n in range(32):
        c, s = n >> 2, n & 3; b = n & 1
        rd = k1_reads(e, K, role, n + 1) if n + 1 < 32 else []
        bar = s == 3 and c < 7
        pre = OPT['pre'] if bar else 0
        if n == 20 and role in (0, 2): dm = dm + k1_phi_load(e, K)
        for i, (w, x) in enumerate(U):
            if bar and i == pre:
                for f in dm: f()
                e.stamp(3 + c); e.wait_tag(f'c{c+1}', lg=0); e('s_barrier')
                dm = k1_dma(e, K, role, c + 3) if c + 3 < 8 else []
                if pre:
                    for t in rd[:3]: e(t)
                    rd = rd[3:]
            acc = vr(K.ACC + 16*i, 16)
            e(f'{MF} {acc}, {vr(K.WF + b*12 + w*4, 4)}, {vr(K.XF + b*8 + x*4, 4)}, {acc if n else 0}')
            if i >= pre:
                k = -(-len(rd) // max(1, len(U) - 1 - i))
                for t in rd[:k]: e(t)
                rd = rd[k:]
                left = (len(U) - i) + len(U) * ((2 - s) % 4 if OPT['spread'] else 0)
                k = -(-len(dm) // left)
                if OPT['spread'] and len(dm) < left and (left - len(dm)) % 2 == 1 and len(dm) * 2 < left + 2: k = 0
                for f in dm[:k]: f()
                dm = dm[k:]

def k1_phi_load(e, K):
    L, T, V = K.vL, K.sT, K.vT
    def pre():
        e(f'v_and_b32 v{V}, 24, v{L}'); e(f'v_and_b32 v{V+1}, 3, v{L}'); e(f'v_lshl_add_u32 v{V}, v{V+1}, 1, v{V}')
        e(f'v_and_b32 v{V+1}, 32, v{L}'); e(f'v_lshl_add_u32 v{V}, v{V+1}, 2, v{V}')
        e(f's_lshl_b32 s{T+2}, s{K.sG}, 11'); e(f's_lshl_b32 s{T+1}, s{K.sCG}, 10'); e(f's_add_u32 s{T+2}, s{T+2}, s{T+1}')
    def mk(hd, i):
        d = 8*(i >> 2) + (i & 3)
        return lambda: e(f'buffer_load_ushort v{K.TP + 8*hd + i}, v{V}, s[{K.PH}:{K.PH+3}], s{T+2} offen offset:{hd*512 + d*32}', tag='ph')
    return [pre] + [mk(hd, i) for hd in range(2) for i in range(8)]

def epi_phi_sign(e, K):
    V = K.vT
    e(f'v_and_b32 v{V}, 4, v{K.vL}'); e(f'v_cmp_ne_u32 vcc, 0, v{V}'); e(f'v_mov_b32 v{V}, 0x80008000'); e(f'v_cndmask_b32 v{V}, 0, v{V}, vcc')
    for i in range(8): e(f'v_lshl_or_b32 v{K.vPH+i}, v{K.TP+2*i+1}, 16, v{K.TP+2*i}')
    for i in range(8): e(f'v_xor_b32 v{K.vPH+i}, v{V}, v{K.vPH+i}')

def epi_gu(e, K, a, t, stile, add, xs):
    for j in range(8): e(f'v_mul_f32 v{t+j}, s{K.sNL2E}, v{a+j}')
    for j in range(8): e(f'v_exp_f32 v{t+j}, v{t+j}')
    for j in range(8): e(f'v_add_f32 v{t+j}, 1.0, v{t+j}')
    for j in range(8): e(f'v_rcp_f32 v{t+j}, v{t+j}')
    for j in range(8): e(f'v_mul_f32 v{t+j}, v{t+j}, v{a+8+j}')
    for j in range(4): e(f'v_cvt_pk_bf16_f32 v{a+j}, v{t+2*j}, v{t+2*j+1}')
    e(f's_add_u32 s{K.sT}, s{stile}, {add*65536}')
    e(f'buffer_store_dwordx4 {vr(a, 4)}, v{K.vST+xs}, s[{K.H}:{K.H+3}], s{K.sT} offen')

def epi_p(e, K, src, hd, p, t):
    for j in range(4): e(f'v_cvt_pk_bf16_f32 v{t+j}, v{src+2*j}, v{src+2*j+1}')
    e(f'{MF} {vr(p, 16)}, {vr(K.vPH + 4*hd, 4)}, {vr(t, 4)}, 0')

def epi_softmax(e, K, p, t, o):
    e(f'v_max3_f32 v{t}, v{p}, v{p+1}, v{p+2}'); e(f'v_max3_f32 v{t+1}, v{p+3}, v{p+4}, v{p+5}')
    for j in range(6, 16, 4):
        e(f'v_max3_f32 v{t}, v{t}, v{p+j}, v{p+j+1}')
        if j + 2 < 16: e(f'v_max3_f32 v{t+1}, v{t+1}, v{p+j+2}, v{p+j+3}')
    e(f'v_max_f32 v{t}, v{t}, v{t+1}'); e(f'v_mul_f32 v{t}, s{K.sNL2E}, v{t}')
    for j in range(16): e(f'v_fma_f32 v{p+j}, v{p+j}, s{K.sL2E}, v{t}')
    for j in range(16): e(f'v_exp_f32 v{p+j}, v{p+j}')
    e(f'v_add_f32 v{t}, v{p}, v{p+1}'); e(f'v_add_f32 v{t+1}, v{p+2}, v{p+3}')
    for j in range(4, 16, 2):
        e(f'v_add_f32 v{t}, v{t}, v{p+j}'); e(f'v_add_f32 v{t+1}, v{t+1}, v{p+j+1}')
    e(f'v_add_f32 v{t}, v{t}, v{t+1}'); e(f'v_rcp_f32 v{t}, v{t}')
    for j in range(16): e(f'v_mul_f32 v{p+j}, v{p+j}, v{t}')
    for j in range(8): e(f'v_cvt_pk_bf16_f32 v{o+j}, v{p+2*j}, v{p+2*j+1}')

def k1_epi(e, K, role):
    T, V, L, A, TP = K.sT, K.vT, K.vL, K.ACC, K.TP
    U = units(role)
    if role in (1, 3):
        e(f's_lshl_b32 s{T+1}, s{K.sCG}, 1'); e(f's_add_u32 s{T+1}, s{T+1}, s{K.sP}'); e(f's_lshl_b32 s{T+1}, s{T+1}, 16')
        e(f's_lshl_b32 s{T+2}, s{K.sP}, 16')
        for i, (w, x) in enumerate(U):
            if w < 2: epi_gu(e, K, A + 16*i, TP + 8*(i & 1), T+1, w + (2 if role == 3 else 0), x)
            else: epi_gu(e, K, A + 16*i, TP + 8*(i & 1), T+2, 4, x)
        if role == 1: e('s_barrier')
    elif role == 2:
        epi_phi_sign(e, K)
        for i in range(4): epi_p(e, K, A + 16*(i >> 1) + 8*(i & 1), i & 1, TP + 16*i, TP + 64 + 4*i)
        e(f's_add_u32 s{T+1}, s{K.sCG}, s{K.sP}'); e(f's_lshl_b32 s{T+1}, s{T+1}, 16')
        for i in (2, 3): epi_gu(e, K, A + 16*i, TP + 80 + 8*(i & 1), T+1, 0, U[i][1])
        e(f's_lshl_b32 s{T+1}, s{K.sG}, 19'); e(f's_lshl_b32 s{T+2}, s{K.sCG}, 18'); e(f's_add_u32 s{T+1}, s{T+1}, s{T+2}')
        for i in range(4):
            epi_softmax(e, K, TP + 16*i, V, A + 8*i)
            for s in range(2):
                e(f's_add_u32 s{T}, s{T+1}, {((i & 1)*2 + s)*65536}')
                e(f'buffer_store_dwordx4 {vr(A + 8*i + 4*s, 4)}, v{K.vST + (i >> 1)}, s[{K.PQ}:{K.PQ+3}], s{T} offen')
    else:
        epi_phi_sign(e, K)
        for i, (w, x) in enumerate(U): epi_p(e, K, A + 16*i, w, TP + 16*i, TP + 64 + 4*i)
        W = K.vWA
        e(f'v_and_b32 v{W}, 31, v{L}'); e(f'v_lshlrev_b32 v{W}, 6, v{W}'); e(f'v_lshrrev_b32 v{W+3}, 5, v{L}')
        e(f's_mul_i32 s{T}, s{K.sCG}, {49152 + 4096}'); e(f's_lshl_b32 s{T+1}, s{K.sTP}, 13'); e(f's_add_u32 s{T}, s{T}, s{T+1}')
        e(f'v_add_u32 v{W}, s{T}, v{W}')
        X = K.vXA
        e(f'v_lshl_add_u32 v{X}, v{W+3}, 5, v{W}'); e(f'v_xor_b32 v{X+1}, 4096, v{X}')
        e(f'v_lshl_add_u32 v{X+2}, v{W+3}, 3, v{W}'); e(f'v_xor_b32 v{X+3}, 4096, v{X+2}')
        e(f'v_lshl_add_u32 v{X+4}, v{W+3}, 4, v{W}'); e(f'v_xor_b32 v{X+5}, 4096, v{X+4}')
        O = TP + 80
        for j in range(4): e(f'v_mov_b32 v{O+j}, 0x3f803f80')
        for i, (w, x) in enumerate(U):
            a = A + 16*i
            for j in range(4): e(f'v_cvt_pk_bf16_f32 v{a+8+j}, v{a+8+2*j}, v{a+9+2*j}')
            e(f'ds_write_b64 v{X+2+x}, {vr(a+8, 2)} offset:{w*32768 + 2048}')
            e(f'ds_write_b64 v{X+2+x}, {vr(a+10, 2)} offset:{w*32768 + 2048 + 16}')
            e(f'ds_write_b128 v{X+4+x}, {vr(O, 4)} offset:{w*32768 + 2048 + 32}')
        for i, (w, x) in enumerate(U):
            a = A + 16*i
            epi_softmax(e, K, TP + 16*i, V, a)
            e(f'ds_write_b128 v{X+x}, {vr(a, 4)} offset:{w*32768}')
            e(f'ds_write_b128 v{X+x}, {vr(a+4, 4)} offset:{w*32768 + 16}')
        e(f'v_bfe_u32 v{V}, v{L}, 2, 2'); e(f'v_lshl_add_u32 v{V}, v{W+3}, 3, v{V}'); e(f'v_lshlrev_b32 v{V}, 6, v{V}')
        e(f'v_and_b32 v{V+1}, 16, v{L}'); e(f'v_lshl_add_u32 v{V}, v{V+1}, 1, v{V}')
        e(f'v_and_b32 v{V+1}, 3, v{L}'); e(f'v_lshl_add_u32 v{V}, v{V+1}, 3, v{V}')
        e(f's_mul_i32 s{T}, s{K.sCG}, 49152'); e(f's_lshl_b32 s{T+1}, s{K.sTP}, 15'); e(f's_add_u32 s{T}, s{T}, s{T+1}')
        e(f'v_add_u32 v{V}, s{T}, v{V}')
        e(f'v_and_b32 v{V+1}, 31, v{L}'); e(f'v_lshlrev_b32 v{V+1}, 2, v{V+1}'); e(f'v_lshl_add_u32 v{V+1}, v{W+3}, 9, v{V+1}')
        e(f's_lshl_b32 s{T}, s{K.sG}, 2'); e(f's_add_u32 s{T}, s{T}, s{K.sA}'); e(f's_lshl_b32 s{T}, s{T}, 12')
        e.waitcnt(lg=0); e('s_barrier')
        for k in range(8):
            for m in range(2):
                for r in range(2):
                    e(f'ds_read_b64_tr_b16 {vr(TP + 8*k + 4*m + 2*r, 2)}, v{V} offset:{(k >> 1)*4096 + m*2048 + ((k & 1)*16 + 4*r)*64}')
        for k in range(8):
            e(f'{MF} {vr(A, 16)}, {vr(TP + 8*k + 4, 4)}, {vr(TP + 8*k, 4)}, {vr(A, 16) if k else 0}')
        for j in range(8):
            e(f'buffer_atomic_add_f32 v{A+j}, v{V+1}, s[{K.KV}:{K.KV+3}], s{T} offen offset:{(8*(j >> 2) + (j & 3))*128}')
        e('s_mov_b32 exec_hi, 0')
        e(f'buffer_atomic_add_f32 v{A+8}, v{V+1}, s[{K.KV}:{K.KV+3}], s{T} offen offset:2048')

def gen_k1(name):
    K = K1; e = Stream(); k1_common(e, K, name)
    txt = e.text()
    for role in range(4):
        f = e.fork()
        if role: f.label(f'{name}_r{role}')
        k1_dma_setup(f, K, role); k1_main(f, K, role); f.stamp(10); k1_epi(f, K, role); f.stamp(11); f.stamp_flush(13, 12, K.sW, 0xE00000)
        if role == 3: f.label(f'{name}_end')
        f('s_endpgm')
        txt += f.text()
    return txt


from gen import P2, p2_setup, p2_tail
import gen
def gen_k2p(name):
    e = Stream(); P = P2
    gen.WS_O = WS_PQ
    e('s_cmp_ge_u32 s2, 256'); e(f's_cbranch_scc1 {name}_end')
    e.stamp(0)
    e('s_load_dwordx2 s[4:5], s[0:1], 0'); e('s_load_dwordx2 s[6:7], s[0:1], 24')
    e('s_load_dwordx4 s[8:11], s[0:1], 56'); e('s_load_dwordx2 s[12:13], s[0:1], 80')
    code_prefetch(e, name, name + '_end', 12)
    e(f'v_lshrrev_b32 v{P.vT0}, 6, v0'); e(f'v_and_b32 v{P.vLane}, 63, v0'); e(f'v_readfirstlane_b32 s{P.sW}, v{P.vT0}')
    KV = 56; vKV = 15
    srd(e, KV, 12, 13, 32*4096, WS_KV)
    e(f'v_and_b32 v{vKV}, 31, v{P.vLane}'); e(f'v_min_u32 v{vKV}, 16, v{vKV}'); e(f'v_lshlrev_b32 v{vKV}, 7, v{vKV}')
    e(f'v_and_b32 v{P.vT0}, 32, v{P.vLane}'); e(f'v_lshl_add_u32 v{vKV}, v{P.vT0}, 1, v{vKV}')
    e(f's_lshl_b32 s60, s{P.sW}, 14')
    R = 96
    kvr = lambda j: R + 16*j
    phi = lambda j: R + 64 + 16*j
    for j in range(4):
        if j: e(f's_add_u32 s60, s60, 4096')
        for q in range(4): e(f'buffer_load_dwordx4 {vr(kvr(j) + 4*q, 4)}, v{vKV}, s[{KV}:{KV+3}], s60 offen offset:{16*q}')
    p2_setup(e, P, 4, 6, 8, 10, 12)
    e(f's_mov_b32 s{P.O+2}, {64*65536}'); e(f's_lshl_b32 s{P.sT+5}, s{P.sW}, 19')
    def dma(i):
        srdn, base, k = (P.WD, P.sT+2, i - 4) if i >= 4 else (P.WO, P.sT+3, i)
        for hf in range(2):
            e(f's_add_u32 m0, s{P.sREG}, {(i % 10) * 2048 + hf * 1024}')
            e(f's_add_u32 s{P.sT}, s{base}, {k * 16384 + hf * 8192}')
            e(f'buffer_load_dwordx4 v{P.vDMA}, s[{srdn}:{srdn+3}], s{P.sT} offen lds', tag=f'w{i}')
    af = {}
    for j in range(4): af[j] = kvr(j) + 8
    for i in range(4, 8): af[i] = R + 128 + 8*(i - 4)
    for i in range(8, 15): af[i] = R + 64 + 8*(i - 8)
    def aload(i):
        e(f's_add_u32 s{P.sT}, s{P.sT+4}, {(i - 4) * 65536}')
        for mt in range(2):
            e(f'buffer_load_dwordx4 {vr(af[i] + mt*4, 4)}, v{P.vA}, s[{P.H}:{P.H+3}], s{P.sT} offen offset:{mt*1024}')
    for j in range(4):
        for s in range(2):
            e(f's_add_u32 s{P.sT}, s{P.sT+5}, {(2*j + s) * 65536}')
            for mt in range(2):
                e(f'buffer_load_dwordx4 {vr(phi(j) + mt*8 + s*4, 4)}, v{P.vA}, s[{P.O}:{P.O+3}], s{P.sT} offen offset:{mt*1024}')
    for i in range(4): dma(i)
    for i in range(4, 8): dma(i); aload(i)
    dma(8); dma(9)
    e(f'buffer_load_dwordx4 {vr(P.vX, 4)}, v{P.vXo}, s[{P.X}:{P.X+3}], 0 offen')
    def omf(j):
        for q in range(8): e(f'v_cvt_pk_bf16_f32 v{kvr(j) + q}, v{kvr(j) + 2*q}, v{kvr(j) + 2*q + 1}')
        for mt in range(2):
            c = vr(P.ACC + 32*(j & 1) + 16*mt, 16)
            for s in range(2): e(f'{MF} {c}, {vr(kvr(j) + 4*s, 4)}, {vr(phi(j) + mt*8 + s*4, 4)}, {c if s else 0}')
    def ofin(j):
        for mt in range(2):
            c = P.ACC + 32*(j & 1) + 16*mt
            e(f'v_add_f32 v{c+8}, 0x358637bd, v{c+8}'); e(f'v_rcp_f32 v{c+8}, v{c+8}')
        for mt in range(2):
            c = P.ACC + 32*(j & 1) + 16*mt
            for q in range(8): e(f'v_mul_f32 v{c+q}, v{c+q}, v{c+8}')
            for q in range(4): e(f'v_cvt_pk_bf16_f32 v{af[j] + 4*mt + q}, v{c+2*q}, v{c+2*q+1}')
    e.stamp(1)
    omf(0); e.stamp(2)
    for j in range(4):
        if j < 3: omf(j + 1)
        ofin(j)
        aload(8 + 2*j)
        if j < 3: aload(9 + 2*j)
    def wread(i):
        b = P.WF + (i & 1) * 8
        e.wait_tag(f'w{i}')
        for nt in range(2):
            for r in range(2):
                e(f'ds_read_b64_tr_b16 {vr(b + nt*4 + r*2, 2)}, v{P.vT0 + nt} offset:{(i % 10) * 2048 + r * 1024}', tag=f'r{i}')
    e.stamp(5); wread(0)
    for i in range(15):
        if i + 1 < 15: wread(i + 1)
        if i < 5:
            e.wait_lg_tag(f'r{i}'); dma(i + 10)
        b = P.WF + (i & 1) * 8
        for nt in range(2):
            for mt in range(2):
                acc = vr(P.ACC + (mt*2 + nt) * 16, 16)
                e(f'{MF} {acc}, {vr(af[i] + mt*4, 4)}, {vr(b + nt*4, 4)}, {acc if i else 0}')
    e.stamp(3); p2_tail(e, P); e.stamp(6); e.stamp_flush(8, 12, P.sW, 0xE20000)
    e.label(f'{name}_end'); e('s_endpgm')
    return e.text()

def full():
    return wrap([('k0_kernel', gen_k0('k0_kernel'), 512, 0), ('k1_kernel', gen_k1('k1_kernel'), 512, 163840), ('k2_kernel', gen_k2p('k2_kernel'), 512, 163840)])
if __name__ == '__main__':
    open('v1.s', 'w').write(full())
```

```python
import sys; sys.path.insert(0, 'work')
from asmlib import *
NAME = 'parallel_sum__linear_kernel_hedgehog__glu_gated_glu__prompt'
WS_H, WS_O, WS_ST, WS_CS, WS_KV, WS_FL = 0, 0x600000, 0x800000, 0x900000, 0xA00000, 0xB00000
MF = 'v_mfma_f32_32x32x16_bf16'

def srd(e, d, lo, hi, n, add=0):
    if add:
        e(f's_add_u32 s{d}, s{lo}, {add:#x}'); e(f's_addc_u32 s{d+1}, s{hi}, 0')
    else:
        e(f's_mov_b32 s{d}, s{lo}'); e(f's_mov_b32 s{d+1}, s{hi}')
    e(f's_mov_b32 s{d+2}, {n:#x}'); e(f's_mov_b32 s{d+3}, 0x20000')

def code_prefetch(e, label, endlabel, v, tid='v0'):
    e(f's_getpc_b64 s[100:101]')
    e.label(f'{label}_pc')
    e(f'v_lshlrev_b32 v{v}, 7, {tid}')
    e(f'v_min_u32 v{v}, {endlabel}-{label}_pc, v{v}')
    e(f'v_mov_b32 v{v+1}, s101')
    e(f'v_add_co_u32 v{v}, vcc, s100, v{v}')
    e(f'v_addc_co_u32 v{v+1}, vcc, 0, v{v+1}, vcc')
    e(f'global_load_dword v{v+2}, v[{v}:{v+1}], off', tag='pf')

class P2:
    sW, sRT, sCT, sREG = 20, 21, 22, 23
    WD, WO, H, O, X, OUT = 24, 28, 32, 36, 40, 44
    sT = 48
    vDMA, vA, vT0, vT1, vLane, vXo, vRd = 1, 2, 3, 4, 5, 6, 7
    vX = 8
    ACC = 16
    WF = 80
    AF = 96

def p2_setup(e, P, kX, kWO, kWD, kOUT, kWS):
    e(f's_and_b32 s{P.sT}, s2, 7'); e(f's_lshr_b32 s{P.sT+1}, s2, 3')
    e(f's_lshl_b32 s{P.sRT}, s{P.sT}, 2'); e(f's_and_b32 s{P.sT}, s{P.sT+1}, 3'); e(f's_add_u32 s{P.sRT}, s{P.sRT}, s{P.sT}')
    e(f's_lshr_b32 s{P.sCT}, s{P.sT+1}, 2')
    e(f's_mul_i32 s{P.sREG}, s{P.sW}, 20480')
    srd(e, P.WD, kWD, kWD+1, 1376*1024); srd(e, P.WO, kWO, kWO+1, 512*1024)
    srd(e, P.H, kWS, kWS+1, 86*65536, WS_H); srd(e, P.O, kWS, kWS+1, 32*65536, WS_O)
    srd(e, P.X, kX, kX+1, 2048*1024); srd(e, P.OUT, kOUT, kOUT+1, 2048*1024)
    L = P.vLane
    e(f'v_lshrrev_b32 v{P.vT0}, 3, v{L}')
    e(f'v_and_b32 v{P.vT1}, 7, v{L}')
    e(f'v_lshlrev_b32 v{P.vDMA}, 1, v{P.vT0}'); e(f'v_and_b32 v{P.vDMA}, 4, v{P.vDMA}')
    e(f'v_xor_b32 v{P.vDMA}, v{P.vDMA}, v{P.vT1}'); e(f'v_lshlrev_b32 v{P.vDMA}, 4, v{P.vDMA}')
    e(f'v_lshl_add_u32 v{P.vDMA}, v{P.vT0}, 10, v{P.vDMA}')
    e(f's_lshl_b32 s{P.sT}, s{P.sCT}, 7'); e(f'v_add_u32 v{P.vDMA}, s{P.sT}, v{P.vDMA}')
    e(f'v_lshlrev_b32 v{P.vXo}, 4, v{P.vT1}'); e(f'v_lshl_add_u32 v{P.vXo}, v{P.vT0}, 10, v{P.vXo}')
    e(f's_lshl_b32 s{P.sT+1}, s{P.sRT}, 16'); e(f's_add_u32 s{P.sT}, s{P.sT}, s{P.sT+1}')
    e(f's_lshl_b32 s{P.sT+1}, s{P.sW}, 13'); e(f's_add_u32 s{P.sT}, s{P.sT}, s{P.sT+1}')
    e(f'v_add_u32 v{P.vXo}, s{P.sT}, v{P.vXo}')
    e(f'v_and_b32 v{P.vRd}, 1, v{P.vT0}'); e(f'v_mul_u32_u24 v{P.vRd}, 272, v{P.vRd}')
    e(f'v_and_b32 v{P.vA}, 2, v{P.vT0}'); e(f'v_mul_u32_u24 v{P.vA}, 320, v{P.vA}'); e(f'v_add_u32 v{P.vRd}, v{P.vRd}, v{P.vA}')
    e(f'v_and_b32 v{P.vA}, 4, v{P.vT0}'); e(f'v_lshl_add_u32 v{P.vRd}, v{P.vA}, 5, v{P.vRd}')
    e(f'v_and_b32 v{P.vA}, 3, v{P.vT1}'); e(f'v_lshl_add_u32 v{P.vRd}, v{P.vA}, 5, v{P.vRd}')
    e(f'v_and_b32 v{P.vA}, 4, v{P.vT1}'); e(f'v_mul_u32_u24 v{P.vA}, 1280, v{P.vA}'); e(f'v_add_u32 v{P.vRd}, v{P.vRd}, v{P.vA}')
    e(f's_lshr_b32 s{P.sT}, s{P.sW}, 2'); e(f's_lshl_b32 s{P.sT}, s{P.sT}, 3'); e(f's_and_b32 s{P.sT+1}, s{P.sW}, 3')
    e(f's_add_u32 s{P.sT}, s{P.sT}, s{P.sT+1}'); e(f's_mul_i32 s{P.sT}, s{P.sT}, 1280')
    e(f'v_add_u32 v{P.vRd}, s{P.sT}, v{P.vRd}')
    e(f's_lshl_b32 s{P.sT}, s{P.sRT}, 11'); e(f'v_lshlrev_b32 v{P.vA}, 4, v{L}'); e(f'v_add_u32 v{P.vA}, s{P.sT}, v{P.vA}')
    e(f'v_lshrrev_b32 v{P.vT0}, 5, v{L}'); e(f'v_lshlrev_b32 v{P.vT0}, 9, v{P.vT0}')
    e(f'v_bfe_u32 v{P.vT1}, v{L}, 2, 2'); e(f'v_lshl_add_u32 v{P.vT0}, v{P.vT1}, 7, v{P.vT0}')
    e(f'v_and_b32 v{P.vT1}, 8, v{L}'); e(f'v_lshl_add_u32 v{P.vT0}, v{P.vT1}, 3, v{P.vT0}')
    e(f'v_and_b32 v{P.vT1}, 16, v{L}'); e(f'v_lshl_add_u32 v{P.vT0}, v{P.vT1}, 1, v{P.vT0}')
    e(f'v_and_b32 v{P.vT1}, 3, v{L}'); e(f'v_lshl_add_u32 v{P.vT0}, v{P.vT1}, 3, v{P.vT0}')
    e(f'v_add_u32 v{P.vT0}, s{P.sREG}, v{P.vT0}')
    e(f'v_xor_b32 v{P.vT1}, 64, v{P.vT0}')
    e(f's_mul_i32 s{P.sT+2}, s{P.sW}, {11*16384}'); e(f's_lshl_b32 s{P.sT+3}, s{P.sW}, 16')
    e(f's_mul_i32 s{P.sT+4}, s{P.sW}, {11*65536}'); e(f's_lshl_b32 s{P.sT+5}, s{P.sW}, 18')

def p2_dma(e, P, i):
    srdn, base, k = (P.WD, P.sT+2, i) if i < 11 else (P.WO, P.sT+3, i - 11)
    for hf in range(2):
        e(f's_add_u32 m0, s{P.sREG}, {(i % 10) * 2048 + hf * 1024}')
        e(f's_add_u32 s{P.sT}, s{base}, {k * 16384 + hf * 8192}')
        e(f'buffer_load_dwordx4 v{P.vDMA}, s[{srdn}:{srdn+3}], s{P.sT} offen lds', tag=f'w{i}')

def p2_aload(e, P, i, sc=''):
    srdn, base, k = (P.H, P.sT+4, i) if i < 11 else (P.O, P.sT+5, i - 11)
    e(f's_add_u32 s{P.sT}, s{base}, {k * 65536}')
    for mt in range(2):
        e(f'buffer_load_dwordx4 {vr(P.AF + i*8 + mt*4, 4)}, v{P.vA}, s[{srdn}:{srdn+3}], s{P.sT} offen offset:{mt*1024}{sc}')

def p2_wread(e, P, i):
    b = P.WF + (i & 1) * 8
    e.wait_tag(f'w{i}')
    for nt in range(2):
        for r in range(2):
            e(f'ds_read_b64_tr_b16 {vr(b + nt*4 + r*2, 2)}, v{P.vT0 + nt} offset:{(i % 10) * 2048 + r * 1024}', tag=f'r{i}')

def p2_mfma(e, P, i):
    b = P.WF + (i & 1) * 8
    for nt in range(2):
        for mt in range(2):
            acc = vr(P.ACC + (mt*2 + nt) * 16, 16)
            e(f'{MF} {acc}, {vr(P.AF + i*8 + mt*4, 4)}, {vr(b + nt*4, 4)}, {acc if i else 0}')

def p2_tail(e, P):
    e(f's_mov_b32 m0, s{P.sREG}')
    skew = [0, 272, 640, 912]
    for t in range(4):
        for j in range(16):
            e(f'ds_write_addtid_b32 v{P.ACC + t*16 + j} offset:{(t*4 + (j >> 2)) * 1280 + skew[j & 3]}')
    e(f'v_add_u32 v{P.vT0}, {3*20480}, v{P.vRd}'); e(f'v_add_u32 v{P.vT1}, {6*20480}, v{P.vRd}')
    e.waitcnt(lg=0)
    e('s_barrier'); e.stamp(4)
    R = P.AF
    for w in range(8):
        a = [P.vRd, P.vT0, P.vT1][w // 3]
        for q in range(2):
            e(f'ds_read_b128 {vr(R + w*8 + q*4, 4)}, v{a} offset:{(w % 3) * 20480 + q*16}')
    S = P.ACC
    for q in range(4):
        e(f'v_lshlrev_b32 v{S + 2*q}, 16, v{P.vX + q}'); e(f'v_and_b32 v{S + 2*q + 1}, 0xffff0000, v{P.vX + q}')
    for w in range(8):
        for q in range(8):
            e(f'v_add_f32 v{S + q}, v{S + q}, v{R + w*8 + q}')
    for q in range(4):
        e(f'v_cvt_pk_bf16_f32 v{S + 8 + q}, v{S + 2*q}, v{S + 2*q + 1}')
    e(f'buffer_store_dwordx4 {vr(S + 8, 4)}, v{P.vXo}, s[{P.OUT}:{P.OUT+3}], 0 offen')

def gen_k2(name):
    e = Stream(); P = P2
    e('s_cmp_ge_u32 s2, 256'); e(f's_cbranch_scc1 {name}_end')
    e('s_load_dwordx2 s[4:5], s[0:1], 0'); e('s_load_dwordx2 s[6:7], s[0:1], 24')
    e('s_load_dwordx4 s[8:11], s[0:1], 56'); e('s_load_dwordx2 s[12:13], s[0:1], 80')
    code_prefetch(e, name, name + '_end', 12)
    e(f'v_lshrrev_b32 v{P.vT0}, 6, v0'); e(f'v_and_b32 v{P.vLane}, 63, v0'); e(f'v_readfirstlane_b32 s{P.sW}, v{P.vT0}')
    p2_setup(e, P, 4, 6, 8, 10, 12)
    for i in range(10):
        p2_dma(e, P, i); p2_aload(e, P, i)
    e(f'buffer_load_dwordx4 {vr(P.vX, 4)}, v{P.vXo}, s[{P.X}:{P.X+3}], 0 offen')
    p2_wread(e, P, 0)
    for i in range(15):
        if i + 1 < 15: p2_wread(e, P, i + 1)
        if i < 5:
            e.wait_lg_tag(f'r{i}')
            p2_dma(e, P, i + 10); p2_aload(e, P, i + 10)
        p2_mfma(e, P, i)
    p2_tail(e, P)
    e.label(f'{name}_end'); e('s_endpgm')
    return e.text()

def wrap(kernels):
    hdr = open(f'cdna_kernels/{NAME}.s.ref').read().split('; Override')[0]
    if len(kernels) == 1 and kernels[0][0] == NAME + '_kernel':
        hdr += f'; @launch grid=(256,1,1) block=({kernels[0][2]},1,1) lds={kernels[0][3]}\n'
    else:
        for n, t, b, l in kernels: hdr += f'; @launch kernel={n} grid=(256,1,1) block=({b},1,1) lds={l}\n'
    s = hdr + '.amdgcn_target "amdgcn-amd-amdhsa--gfx950"\n.text\n'
    seen = []
    for n, t, b, l in kernels:
        if n in seen: continue
        seen.append(n)
        s += f'.globl {n}\n.p2align 8\n.type {n},@function\n{n}:\n{t}'
    s += '.p2align 8\n.fill 64, 4, 0xBF810000\n'
    s += '.section .rodata,"a"\n'
    for n in seen: s += '.p2align 6\n' + kernel_desc(n)
    return s

if __name__ == '__main__':
    s = wrap([('k2_kernel', gen_k2('k2_kernel'), 512, 163840)])
    open('k2.s', 'w').write(s)
```

```python
import sys; sys.path.insert(0, 'work')
from asmlib import *
from gen import NAME, MF, srd, code_prefetch, wrap
import g1
from g1 import wave_sum, units, k1_reads, k1_read_setup, epi_p, epi_softmax, XS, KVB, KVS, GU5, GU5S, GU5U, QB, QS, GU6, GU6S, GU6U, LOG2E
WS_H, WS_O, WS_XN, WS_KV, WS_XF, WS_HF, WS_OF, WS_KF, WS_EP = 0, 0x600000, 0x800000, 0xA00000, 0xA40000, 0xA80000, 0xAC0000, 0xAE0000, 0xAF0000
WS_TS = 0xE00000
PHL, TAGL = 160512, 162560
OPT0 = dict(pro=2, pre=1, opoll=9, pf1=1, pf2=1, prio=0); OPT = dict(OPT0)

class K:
    sRT, sCT, sREG, sB, sTAG, sLD, sSP, sL2E, sNL2E, sWG = 4, 5, 6, 8, 12, 13, 14, 15, 16, 17
    sW, sR, sG, sTP, sCG, sC, sP, sA = 20, 21, 22, 23, 24, 25, 26, 27
    WS, H, WQ, GU, PH, WD, WO, XR, OUT = 28, 32, 36, 40, 44, 48, 52, 56, 60
    sT = 64; sWS = 70
    vL = 1; vD = 2; vPO = 7; vXA = 8; vWA = 16; vT = 20; vST = 24
    vDMA, vA, vT0, vT1, vXo, vRd = 26, 27, 28, 29, 30, 31
    vPH = 32; XF = 40; WF = 56; ACC = 80; TP = 160
    vX = 252
    A2, W2, AF = 32, 96, 112
lab = [0]

def poll(e, off_s=None):
    lab[0] += 1; L = f'poll{lab[0]}'
    e(f's_mov_b32 s{K.sSP}, 0x40000')
    e.label(L)
    e(f'buffer_load_dword v{K.vT+3}, v{K.vPO}, s[{K.WS}:{K.WS+3}], 0 offen sc1')
    e(f's_sub_u32 s{K.sSP}, s{K.sSP}, 1')
    e(f's_cbranch_scc1 {L}x')
    e.waitcnt(vm=0)
    e(f'v_cmp_ne_u32 vcc, s{K.sTAG}, v{K.vT+3}')
    e.raw('  s_nop 1')
    e(f's_cbranch_vccnz {L}')
    e.label(L + 'x')

def flag(e, sidx, base):
    e(f'v_mov_b32 v{K.vT+2}, s{K.sTAG}'); e(f's_add_u32 s{K.sT}, s{sidx}, {base:#x}')
    e('s_mov_b64 exec, 1')
    e(f'buffer_store_dword v{K.vT+2}, off, s[{K.WS}:{K.WS+3}], s{K.sT} sc1')
    e('s_mov_b64 exec, -1')

def common(e, name):
    T = K.sT
    e('s_cmp_ge_u32 s2, 256'); e(f's_cbranch_scc1 {name}_end')
    e.stamp(0)
    e('s_load_dwordx8 s[4:11], s[0:1], 0'); e('s_load_dwordx8 s[12:19], s[0:1], 40'); e(f's_load_dwordx2 s[{K.sWS}:{K.sWS+1}], s[0:1], 80')
    code_prefetch(e, name, name + '_end', 240)
    e(f'v_lshrrev_b32 v{K.vT}, 6, v0'); e(f'v_and_b32 v{K.vL}, 63, v0'); e(f'v_readfirstlane_b32 s{K.sW}, v{K.vT}')
    e(f's_and_b32 s{T}, s2, 7'); e(f's_lshr_b32 s{T+1}, s2, 3')
    e(f's_and_b32 s{K.sR}, s{T}, 1'); e(f's_lshl_b32 s{K.sR}, s{K.sR}, 3'); e(f's_and_b32 s{T+2}, s{T+1}, 7'); e(f's_add_u32 s{K.sR}, s{K.sR}, s{T+2}')
    e(f's_lshr_b32 s{T+1}, s{T+1}, 3')
    e(f's_and_b32 s{K.sC}, s{T}, 6'); e(f's_lshl_b32 s{K.sC}, s{K.sC}, 1'); e(f's_add_u32 s{K.sC}, s{K.sC}, s{T+1}')
    e(f's_lshr_b32 s{K.sG}, s{K.sC}, 1'); e(f's_and_b32 s{T+3}, s{K.sC}, 1')
    e(f's_mul_i32 s{K.sP}, s{K.sG}, 11'); e(f's_min_u32 s{K.sP}, s{K.sP}, 75')
    e(f's_and_b32 s{T+2}, s{K.sP}, 1'); e(f's_sub_u32 s{T+4}, 6, s{T+3}')
    e(f's_cmp_eq_u32 s{T+2}, s{T+3}'); e(f's_cselect_b32 s{T+4}, s{T+4}, 0'); e(f's_add_u32 s{K.sP}, s{K.sP}, s{T+4}')
    e(f's_and_b32 s{K.sTP}, s{K.sW}, 1'); e(f's_bfe_u32 s{K.sCG}, s{K.sW}, 0x10001'); e(f's_and_b32 s{K.sA}, s{K.sW}, 3')
    e(f's_lshr_b32 s{T+2}, s{K.sW}, 2'); e(f's_lshl_b32 s{T+3}, s{T+3}, 1'); e(f's_add_u32 s{T+2}, s{T+2}, s{T+3}')
    srd(e, K.XR, 4, 5, 2048*1024); srd(e, K.WQ, 6, 7, 512*3072)
    e(f's_cmp_eq_u32 s{K.sCG}, 0'); e(f's_cselect_b32 s12, s12, s14'); e(f's_cselect_b32 s13, s13, s15')
    srd(e, K.GU, 12, 13, 512*2752); srd(e, K.PH, 8, 9, 32*512)
    srd(e, K.WS, K.sWS, K.sWS+1, 0x1000000); srd(e, K.H, K.sWS, K.sWS+1, 86*65536)
    srd(e, K.WO, 10, 11, 512*1024); srd(e, K.WD, 16, 17, 1376*1024); srd(e, K.OUT, 18, 19, 2048*1024)
    e(f's_lshl_b32 s{K.sWG}, s{K.sR}, 4'); e(f's_add_u32 s{K.sWG}, s{K.sWG}, s{K.sC}')
    e(f's_mov_b32 s{K.sL2E}, {LOG2E:#x}'); e(f's_mov_b32 s{K.sNL2E}, {LOG2E | 0x80000000:#x}')
    for r in (1, 2, 3): e(f's_cmp_eq_u32 s{T+2}, {r}'); e(f's_cbranch_scc1 {name}_r{r}')

def dma_setup(e, role):
    g1.k1_dma_setup(e, K, role)
    if role in (0, 2): e(f'v_add_u32 v{K.vD}, {WS_XN:#x}, v{K.vD}')

def dma(e, role, c, part='all'):
    T = K.sT; s = c % 3
    def mk(v, srdn, so, lds, sc):
        return (lambda: (e(f's_add_u32 m0, s{K.sLD}, {lds}'), e(f's_mov_b32 s{T+5}, {so}')),
                lambda: e(f'buffer_load_dwordx4 v{v}, s[{srdn}:{srdn+3}], s{T+5} offen{sc} lds', tag=f'c{c}'))
    L = []
    if role in (0, 2):
        if part != 'w':
            for q in range(4): L.append((K.vD, K.WS, c*128 + q*32768, s*XS + q*4096, ' sc1'))
        if part != 'x':
            for q in range(2):
                so = (c*64 + q*32)*3072
                if role == 0:
                    L.append((K.vD+1, K.WQ, so, KVB + s*KVS + q*4096, '')); L.append((K.vD+2, K.WQ, so, KVB + s*KVS + 8192 + q*4096, ''))
                else: L.append((K.vD+1, K.WQ, so, QB + s*QS + q*4096, ''))
    elif role == 1:
        for p in range(5): L.append((K.vD+p, K.GU, c*64*2752, s*GU5S + p*1024, ''))
    else:
        for q in range(2):
            for p in range(3): L.append((K.vD+p, K.GU, (c*64 + q*16)*2752, s*GU6S + q*3072 + p*1024, ''))
    return [mk(*a) for a in L]
def run(L):
    for a, b in L: a(); b()

def p2_setup(e):
    T, L, V = K.sT, K.vL, K.vT
    e(f's_and_b32 s{T}, s2, 7'); e(f's_lshr_b32 s{T+1}, s2, 3')
    e(f's_lshl_b32 s{K.sRT}, s{T}, 2'); e(f's_and_b32 s{T}, s{T+1}, 3'); e(f's_add_u32 s{K.sRT}, s{K.sRT}, s{T}')
    e(f's_lshr_b32 s{K.sCT}, s{T+1}, 2'); e(f's_mul_i32 s{K.sREG}, s{K.sW}, 20480')
    e(f'v_lshrrev_b32 v{V}, 3, v{L}'); e(f'v_and_b32 v{V+1}, 7, v{L}')
    e(f'v_lshlrev_b32 v{K.vDMA}, 1, v{V}'); e(f'v_and_b32 v{K.vDMA}, 4, v{K.vDMA}')
    e(f'v_xor_b32 v{K.vDMA}, v{K.vDMA}, v{V+1}'); e(f'v_lshlrev_b32 v{K.vDMA}, 4, v{K.vDMA}')
    e(f'v_lshl_add_u32 v{K.vDMA}, v{V}, 10, v{K.vDMA}')
    e(f's_lshl_b32 s{T}, s{K.sCT}, 7'); e(f'v_add_u32 v{K.vDMA}, s{T}, v{K.vDMA}')
    e(f'v_lshlrev_b32 v{K.vXo}, 4, v{V+1}'); e(f'v_lshl_add_u32 v{K.vXo}, v{V}, 10, v{K.vXo}')
    e(f's_lshl_b32 s{T+1}, s{K.sRT}, 16'); e(f's_add_u32 s{T}, s{T}, s{T+1}')
    e(f's_lshl_b32 s{T+1}, s{K.sW}, 13'); e(f's_add_u32 s{T}, s{T}, s{T+1}')
    e(f'v_add_u32 v{K.vXo}, s{T}, v{K.vXo}')
    R, A = K.vRd, K.vA
    e(f'v_and_b32 v{R}, 1, v{V}'); e(f'v_mul_u32_u24 v{R}, 272, v{R}')
    e(f'v_and_b32 v{A}, 2, v{V}'); e(f'v_mul_u32_u24 v{A}, 320, v{A}'); e(f'v_add_u32 v{R}, v{R}, v{A}')
    e(f'v_and_b32 v{A}, 4, v{V}'); e(f'v_lshl_add_u32 v{R}, v{A}, 5, v{R}')
    e(f'v_and_b32 v{A}, 3, v{V+1}'); e(f'v_lshl_add_u32 v{R}, v{A}, 5, v{R}')
    e(f'v_and_b32 v{A}, 4, v{V+1}'); e(f'v_mul_u32_u24 v{A}, 1280, v{A}'); e(f'v_add_u32 v{R}, v{R}, v{A}')
    e(f's_lshr_b32 s{T}, s{K.sW}, 2'); e(f's_lshl_b32 s{T}, s{T}, 3'); e(f's_add_u32 s{T}, s{T}, s{K.sA}'); e(f's_mul_i32 s{T}, s{T}, 1280')
    e(f'v_add_u32 v{R}, s{T}, v{R}')
    e(f's_lshl_b32 s{T}, s{K.sRT}, 11'); e(f'v_lshlrev_b32 v{A}, 4, v{L}'); e(f'v_add_u32 v{A}, s{T}, v{A}')
    T0, T1 = K.vT0, K.vT1
    e(f'v_lshrrev_b32 v{T0}, 5, v{L}'); e(f'v_lshlrev_b32 v{T0}, 9, v{T0}')
    e(f'v_bfe_u32 v{T1}, v{L}, 2, 2'); e(f'v_lshl_add_u32 v{T0}, v{T1}, 7, v{T0}')
    e(f'v_and_b32 v{T1}, 8, v{L}'); e(f'v_lshl_add_u32 v{T0}, v{T1}, 3, v{T0}')
    e(f'v_and_b32 v{T1}, 16, v{L}'); e(f'v_lshl_add_u32 v{T0}, v{T1}, 1, v{T0}')
    e(f'v_and_b32 v{T1}, 3, v{L}'); e(f'v_lshl_add_u32 v{T0}, v{T1}, 3, v{T0}')
    e(f'v_add_u32 v{T0}, s{K.sREG}, v{T0}'); e(f'v_xor_b32 v{T1}, 64, v{T0}')
    B = K.sB
    e(f's_mul_i32 s{B}, s{K.sW}, {11*16384}'); e(f's_lshl_b32 s{B+1}, s{K.sW}, 16')
    e(f's_mul_i32 s{B+2}, s{K.sW}, {11*65536}'); e(f's_lshl_b32 s{B+3}, s{K.sW}, 18'); e(f's_add_u32 s{B+3}, s{B+3}, {WS_O:#x}')

def w2dma(e, i):
    srdn, base, k = (K.WD, K.sB, i) if i < 11 else (K.WO, K.sB+1, i - 11)
    def mk(hf):
        return (lambda: (e(f's_add_u32 m0, s{K.sREG}, {(i % 10) * 2048 + hf * 1024}'), e(f's_add_u32 s{K.sT+5}, s{base}, {k * 16384 + hf * 8192}')),
                lambda: e(f'buffer_load_dwordx4 v{K.vDMA}, s[{srdn}:{srdn+3}], s{K.sT+5} offen lds', tag=f'w{i}'))
    return [mk(0), mk(1)]

def ln2(e):
    B = [K.TP + 16, K.TP + 32]; S = [K.TP + 8, K.TP + 12]; sT = K.sT
    def both(f):
        for r in range(2): e(f(K.TP + 4*r, B[r], S[r], sT + r))
    for q in range(4):
        both(lambda x, b, s, t: f'v_lshlrev_b32 v{b+2*q}, 16, v{x+q}'); both(lambda x, b, s, t: f'v_and_b32 v{b+2*q+1}, 0xffff0000, v{x+q}')
    def wsum():
        for d in ('row_shr:1', 'row_shr:2', 'row_shr:4', 'row_shr:8'):
            both(lambda x, b, s, t: f'v_add_f32_dpp v{s}, v{s}, v{s} {d} row_mask:0xf bank_mask:0xf bound_ctrl:0')
        both(lambda x, b, s, t: f'v_add_f32_dpp v{s}, v{s}, v{s} row_bcast:15 row_mask:0xa bank_mask:0xf')
        both(lambda x, b, s, t: f'v_add_f32_dpp v{s}, v{s}, v{s} row_bcast:31 row_mask:0xc bank_mask:0xf')
        both(lambda x, b, s, t: f'v_readlane_b32 s{t}, v{s}, 63')
    both(lambda x, b, s, t: f'v_add_f32 v{s}, v{b}, v{b+1}')
    for q in range(2, 8): both(lambda x, b, s, t: f'v_add_f32 v{s}, v{s}, v{b+q}')
    both(lambda x, b, s, t: f'v_mov_b32 v{s+3}, 0x3b000000')
    wsum()
    both(lambda x, b, s, t: f'v_mul_f32 v{s+1}, s{t}, v{s+3}')
    for q in range(8):
        both(lambda x, b, s, t: f'v_sub_f32 v{s+2}, v{b+q}, v{s+1}')
        both(lambda x, b, s, t: f'v_fmac_f32 v{s}, v{s+2}, v{s+2}' if q else f'v_mul_f32 v{s}, v{s+2}, v{s+2}')
    wsum()
    for f in (lambda x, b, s, t: f'v_mul_f32 v{s}, s{t}, v{s+3}', lambda x, b, s, t: f'v_cvt_pk_bf16_f32 v{s}, v{s}, v{s+1}',
              lambda x, b, s, t: f'v_and_b32 v{s+1}, 0xffff0000, v{s}', lambda x, b, s, t: f'v_lshlrev_b32 v{s}, 16, v{s}',
              lambda x, b, s, t: f'v_add_f32 v{s}, 0x3727c5ac, v{s}', lambda x, b, s, t: f'v_cvt_pk_bf16_f32 v{s}, v{s}, v{s}',
              lambda x, b, s, t: f'v_lshlrev_b32 v{s}, 16, v{s}', lambda x, b, s, t: f'v_sqrt_f32 v{s}, v{s}',
              lambda x, b, s, t: f'v_cvt_pk_bf16_f32 v{s}, v{s}, v{s}', lambda x, b, s, t: f'v_lshlrev_b32 v{s}, 16, v{s}',
              lambda x, b, s, t: f'v_rcp_f32 v{s}, v{s}'): both(f)
    for q in range(8): both(lambda x, b, s, t: f'v_sub_f32 v{b+q}, v{b+q}, v{s+1}')
    for q in range(4): both(lambda x, b, s, t: f'v_cvt_pk_bf16_f32 v{x+q}, v{b+2*q}, v{b+2*q+1}')
    for q in range(4):
        both(lambda x, b, s, t: f'v_lshlrev_b32 v{b+2*q}, 16, v{x+q}'); both(lambda x, b, s, t: f'v_and_b32 v{b+2*q+1}, 0xffff0000, v{x+q}')
    for q in range(8): both(lambda x, b, s, t: f'v_mul_f32 v{b+q}, v{b+q}, v{s}')
    for q in range(4): both(lambda x, b, s, t: f'v_cvt_pk_bf16_f32 v{x+q}, v{b+2*q}, v{b+2*q+1}')

def prologue(e, role):
    T, V, L = K.sT, K.vT, K.vL
    if role in (0, 2):
        X = K.TP + 48
        e(f's_lshl_b32 s{T}, s{K.sWG}, 13'); e(f's_lshl_b32 s{T+1}, s{K.sA}, 11'); e(f's_add_u32 s7, s{T}, s{T+1}')
        e(f'v_lshlrev_b32 v{X}, 4, v{L}')
        for r in range(2): e(f'buffer_load_dwordx4 {vr(K.TP + 4*r, 4)}, v{X}, s[{K.XR}:{K.XR+3}], s7 offen offset:{1024*r}')
        e(f's_mov_b32 s{T}, {WS_EP:#x}'); e(f's_load_dword s{K.sTAG}, s[{K.sWS}:{K.sWS+1}], s{T}')
        e(f's_lshl_b32 s{T+1}, s{K.sCG}, 10'); e(f's_add_u32 m0, s{T+1}, {PHL}')
        e(f's_lshl_b32 s{T}, s{K.sG}, 11'); e(f's_add_u32 s{T}, s{T}, s{T+1}')
        e(f'buffer_load_dwordx4 v{X}, s[{K.PH}:{K.PH+3}], s{T} offen lds', tag='ph')
        dma_setup(e, role)
        run(dma(e, role, 0, 'w'))
        k1_read_setup(e, K, role); p2_setup(e)
        e(f'v_and_b32 v{V}, 12, v{L}'); e(f'v_and_b32 v{V+1}, 3, v{L}'); e(f'v_lshl_add_u32 v{V}, v{V}, 2, v{V+1}')
        e(f's_lshl_b32 s{T}, s{K.sR}, 4'); e(f's_add_u32 s{T}, s{T}, s{K.sA}'); e(f's_lshl_b32 s{T}, s{T}, 2')
        e(f'v_add_u32 v{V}, s{T}, v{V}')
        e(f's_lshl_b32 s{T}, s{K.sG}, 3'); e(f's_add_u32 s{T}, s{T}, s{K.sA}'); e(f'v_mov_b32 v{V+1}, s{T}')
        e(f'v_cmp_gt_u32 vcc, 16, v{L}'); e(f'v_cndmask_b32 v{V}, v{V+1}, v{V}, vcc')
        e(f'v_lshlrev_b32 v{V}, 7, v{V}'); e(f'v_add_u32 v{K.vPO}, {WS_XF:#x}, v{V}')
        e(f's_mul_i32 s{K.sTAG}, s{K.sTAG}, 1664525'); e(f's_add_u32 s{K.sTAG}, s{K.sTAG}, 1013904223')
        e(f'v_mov_b32 v{V}, {TAGL}'); e(f'v_mov_b32 v{V+1}, s{K.sTAG}'); e(f'ds_write_b32 v{V}, v{V+1}')
        if role == 0:
            lab[0] += 1; Z = f'z{lab[0]}'
            for j in range(4): e(f'v_mov_b32 v{X+4+j}, 0')
            e(f's_lshl_b32 s{T}, s{K.sG}, 2'); e(f's_add_u32 s{T}, s{T}, s{K.sA}'); e(f's_lshl_b32 s{T}, s{T}, 12'); e(f's_add_u32 s{T}, s{T}, {WS_KV:#x}')
            e.waitcnt(vm=5)
            e(f's_cmp_lg_u32 s{K.sR}, 0'); e(f's_cbranch_scc1 {Z}')
            for j in range(3): e.raw(f'  buffer_store_dwordx4 {vr(X+4, 4)}, v{X}, s[{K.WS}:{K.WS+3}], s{T} offen offset:{1024*j} sc1')
            e.label(Z)
        ln2(e)
        e(f's_add_u32 s7, s7, {WS_XN:#x}')
        for r in range(2): e(f'buffer_store_dwordx4 {vr(K.TP + 4*r, 4)}, v{X}, s[{K.WS}:{K.WS+3}], s7 offen offset:{1024*r} sc1')
        e.stamp(1)
        e(f's_lshl_b32 s{T+1}, s{K.sWG}, 2'); e(f's_add_u32 s{T+1}, s{T+1}, s{K.sA}'); e(f's_lshl_b32 s{T+1}, s{T+1}, 7')
        e.waitcnt(vm=0)
        flag(e, T+1, WS_XF)
        e.stamp(2)
        poll(e)
        e.stamp(3)
        run(dma(e, role, 0, 'x')); run(dma(e, role, 1))
        e(f'v_bfe_u32 v{V}, v{L}, 2, 2'); e(f'v_lshlrev_b32 v{V}, 5, v{V}')
        e(f'v_and_b32 v{V+1}, 32, v{L}'); e(f'v_lshl_add_u32 v{V}, v{V+1}, 2, v{V}')
        e(f'v_and_b32 v{V+1}, 16, v{L}'); e(f'v_add_u32 v{V}, v{V}, v{V+1}')
        e(f'v_and_b32 v{V+1}, 2, v{L}'); e(f'v_lshl_add_u32 v{V}, v{V+1}, 2, v{V}')
        e(f's_lshl_b32 s{T}, s{K.sCG}, 10'); e(f's_add_u32 s{T}, s{T}, {PHL}'); e(f'v_add_u32 v{V}, s{T}, v{V}')
        for hd in range(2):
            for r in range(2): e(f'ds_read_b64_tr_b16 {vr(K.vPH + 4*hd + 2*r, 2)}, v{V} offset:{hd*512 + r*256}')
        e(f'v_and_b32 v{V+1}, 4, v{L}'); e(f'v_cmp_ne_u32 vcc, 0, v{V+1}'); e(f'v_mov_b32 v{V+1}, 0x80008000'); e(f'v_cndmask_b32 v{V+1}, 0, v{V+1}, vcc')
        for i in range(8): e(f'v_xor_b32 v{K.vPH+i}, v{V+1}, v{K.vPH+i}')
        return dma(e, role, 2)
    else:
        dma_setup(e, role)
        for c in range(3): run(dma(e, role, c))
        if OPT['pf1']:
            last = 156 if role == 1 else 188
            e(f's_and_b32 s{T}, s{K.sR}, 7'); e(f's_lshl_b32 s{T}, s{T}, 6'); e(f'v_add_u32 v{V}, s{T}, v{L}')
            e(f'v_mul_u32_u24 v{V+1}, 2752, v{V}'); e(f'v_mul_u32_u24 v{V}, 3072, v{V}')
            e(f's_lshl_b32 s{T}, s{K.sP}, 5'); e(f's_mul_i32 s{T+1}, s{K.sTP}, {last}'); e(f's_add_u32 s{T+1}, s{T+1}, s{T}')
            e(f'buffer_load_dword v{K.TP}, v{V+1}, s[{K.GU}:{K.GU+3}], s{T+1} offen', tag='pf')
            lab[0] += 1; Z = f'z{lab[0]}'
            e(f's_lshl_b32 s{T+1}, s{K.sG}, 7')
            if role == 1: e(f's_lshl_b32 s{T+2}, s{K.sCG}, 10'); e(f's_add_u32 s{T+1}, s{T+1}, s{T+2}'); e(f's_add_u32 s{T+1}, s{T+1}, 1024')
            e(f's_cmp_eq_u32 s{K.sTP}, 0'); e(f's_cbranch_scc1 {Z}')
            e.raw(f'  buffer_load_dword v{K.TP+1}, v{V}, s[{K.WQ}:{K.WQ+3}], s{T+1} offen')
            e(f's_branch {Z}x'); e.label(Z)
            e(f'buffer_load_dword v{K.TP+1}, v{V+1}, s[{K.GU}:{K.GU+3}], s{T} offen offset:96', tag='pf')
            e.label(Z + 'x')
        e.stamp(1)
        k1_read_setup(e, K, role); p2_setup(e)
        return []

def w2_prefetch(e):
    T, V = K.sT, K.vT
    def pre():
        e(f's_and_b32 s{T}, s{K.sRT}, 3'); e(f's_lshl_b32 s{T}, s{T}, 2'); e(f's_add_u32 s{T}, s{T}, s{K.sA}')
        e(f's_lshl_b32 s{T+1}, s{K.sCT}, 7'); e(f'v_lshlrev_b32 v{V}, 10, v{K.vL}'); e(f'v_add_u32 v{V}, s{T+1}, v{V}')
        e(f's_mul_i32 s{T+1}, s{T}, {86*1024}'); e(f's_add_u32 s{T+2}, s{T+1}, {22*1024}'); e(f's_lshl_b32 s{T}, s{T}, 15')
        e(f'v_and_b32 v{V+1}, 0x7fff, v{V}')
    return [(pre, lambda: e(f'buffer_load_dword v{K.TP+2}, v{V}, s[{K.WD}:{K.WD+3}], s{T+1} offen', tag='pf')),
            (lambda: 0, lambda: e(f'buffer_load_dword v{K.TP+3}, v{V}, s[{K.WD}:{K.WD+3}], s{T+2} offen', tag='pf')),
            (lambda: 0, lambda: e(f'buffer_load_dword v{K.TP+4}, v{V+1}, s[{K.WO}:{K.WO+3}], s{T} offen', tag='pf'))]

def main1(e, role, dm):
    e.wait_tag('c0', lg=0); e('s_barrier'); e.stamp(4)
    if role & 1:
        e(f'v_mov_b32 v{K.vT}, {TAGL}'); e(f'ds_read_b32 v{K.vT}, v{K.vT}')
    for t in k1_reads(e, K, role, 0): e(t)
    if role & 1: e(f'v_readfirstlane_b32 s{K.sTAG}, v{K.vT}')
    if OPT['prio'] and (role & 1): e('s_setprio 1')
    U = units(role)
    for n in range(32):
        c, s = n >> 2, n & 3; b = n & 1
        rd = k1_reads(e, K, role, n + 1) if n + 1 < 32 else []
        bar = s == 3
        pre = OPT['pre'] if bar else 0
        if n == 22:
            dm = dm + [(lambda: 0, lambda: e(f'buffer_load_dwordx4 {vr(K.vX, 4)}, v{K.vXo}, s[{K.XR}:{K.XR+3}], 0 offen'))]
            if (role & 1) and OPT['pf2']: dm = dm + w2_prefetch(e)
        for i, (w, x) in enumerate(U):
            if bar and i == pre:
                run(dm)
                if c == 3: e.stamp(5)
                if c < 7: e.wait_tag(f'c{c+1}', lg=0)
                else: e.waitcnt(lg=0)
                e('s_barrier')
                dm = dma(e, role, c + 3) if c + 3 < 8 else []
                if pre:
                    for t in rd[:3]: e(t)
                    rd = rd[3:]
            go = i >= pre and dm
            if go: dm[0][0]()
            acc = vr(K.ACC + 16*i, 16)
            e(f'{MF} {acc}, {vr(K.WF + b*12 + w*4, 4)}, {vr(K.XF + b*8 + x*4, 4)}, {acc if n else 0}')
            if i >= pre:
                k = -(-len(rd) // max(1, len(U) - 1 - i))
                for t in rd[:k]: e(t)
                rd = rd[k:]
            if go: dm[0][1](); dm = dm[1:]
    if OPT['prio'] and (role & 1): e('s_setprio 0')

def epi_gu(e, a, t, stile, add, xs):
    for j in range(8): e(f'v_mul_f32 v{t+j}, s{K.sNL2E}, v{a+j}')
    for j in range(8): e(f'v_exp_f32 v{t+j}, v{t+j}')
    for j in range(8): e(f'v_add_f32 v{t+j}, 1.0, v{t+j}')
    for j in range(8): e(f'v_rcp_f32 v{t+j}, v{t+j}')
    for j in range(8): e(f'v_mul_f32 v{t+j}, v{t+j}, v{a+8+j}')
    for j in range(4): e(f'v_cvt_pk_bf16_f32 v{a+j}, v{t+2*j}, v{t+2*j+1}')
    e(f's_add_u32 s{K.sT}, s{stile}, {add*65536}')
    e(f'buffer_store_dwordx4 {vr(a, 4)}, v{K.vST+xs}, s[{K.H}:{K.H+3}], s{K.sT} offen sc1', tag='h')

def hflag(e):
    T = K.sT
    e(f's_lshl_b32 s{T+1}, s{K.sWG}, 3'); e(f's_add_u32 s{T+1}, s{T+1}, s{K.sW}'); e(f's_lshl_b32 s{T+1}, s{T+1}, 7')
    e.wait_tag('h'); flag(e, T+1, WS_HF)

def hpoll(e):
    T, V = K.sT, K.vT
    e(f'v_min_u32 v{V}, 5, v{K.vL}'); e(f'v_lshlrev_b32 v{V}, 8, v{V}')
    e(f's_lshr_b32 s{T}, s{K.sRT}, 1'); e(f's_lshl_b32 s{T}, s{T}, 3'); e(f's_add_u32 s{T}, s{T}, s{K.sW}'); e(f's_lshl_b32 s{T}, s{T}, 4')
    e(f's_and_b32 s{T+1}, s{K.sRT}, 1'); e(f's_add_u32 s{T}, s{T}, s{T+1}'); e(f's_lshl_b32 s{T}, s{T}, 7'); e(f's_add_u32 s{T}, s{T}, {WS_HF + 4*128:#x}')
    e(f'v_add_u32 v{K.vPO}, s{T}, v{V}')
    poll(e)
def opoll(e):
    T, V = K.sT, K.vT
    e(f'v_and_b32 v{V}, 1, v{K.vL}'); e(f'v_lshlrev_b32 v{V}, 8, v{V}')
    e(f's_lshr_b32 s{T}, s{K.sRT}, 1'); e(f's_lshl_b32 s{T}, s{T}, 3'); e(f's_add_u32 s{T}, s{T}, s{K.sW}'); e(f's_lshl_b32 s{T}, s{T}, 2')
    e(f's_and_b32 s{T+1}, s{K.sRT}, 1'); e(f's_add_u32 s{T}, s{T}, s{T+1}'); e(f's_lshl_b32 s{T}, s{T}, 7'); e(f's_add_u32 s{T}, s{T}, {WS_OF:#x}')
    e(f'v_add_u32 v{K.vPO}, s{T}, v{V}')
    poll(e)
def aload(e, i):
    srdn, base, k = (K.H, K.sB+2, i) if i < 11 else (K.WS, K.sB+3, i - 11)
    e(f's_add_u32 s{K.sT}, s{base}, {k * 65536}')
    for mt in range(2):
        e(f'buffer_load_dwordx4 {vr(K.AF + i*8 + mt*4, 4)}, v{K.vA}, s[{srdn}:{srdn+3}], s{K.sT} offen offset:{mt*1024} sc1')

def epi1(e, role):
    T, V, L, A, TP = K.sT, K.vT, K.vL, K.ACC, K.TP
    U = units(role)
    W2 = sum([w2dma(e, i) for i in range(10)], [])
    if role in (1, 3):
        e(f's_lshl_b32 s{T+1}, s{K.sCG}, 1'); e(f's_add_u32 s{T+1}, s{T+1}, s{K.sP}'); e(f's_lshl_b32 s{T+1}, s{T+1}, 16')
        e(f's_lshl_b32 s{T+2}, s{K.sP}, 16')
        k = 20 // len(U)
        for i, (w, x) in enumerate(U):
            if w < 2: epi_gu(e, A + 16*i, TP + 8*(i & 1), T+1, w + (2 if role == 3 else 0), x)
            else: epi_gu(e, A + 16*i, TP + 8*(i & 1), T+2, 4, x)
            run(W2[k*i:k*i+k])
        e.stamp(7); hflag(e); e.stamp(8)
        if role == 1: e('s_barrier')
        hpoll(e); e.stamp(9)
        for i in range(11): aload(e, i)
    elif role == 2:
        for i in range(4): epi_p(e, K, A + 16*(i >> 1) + 8*(i & 1), i & 1, TP + 16*i, TP + 64 + 4*i)
        e(f's_add_u32 s{T+1}, s{K.sCG}, s{K.sP}'); e(f's_lshl_b32 s{T+1}, s{T+1}, 16')
        for i in (2, 3): epi_gu(e, A + 16*i, TP + 80, T+1, 0, U[i][1])
        PH = 40
        for i in range(4):
            run(W2[5*i:5*i+5])
            epi_softmax(e, K, TP + 16*i, V, PH + 8*i)
            if i == 0: hflag(e)
        e.stamp(7)
        hpoll(e)
        for i in range(11): aload(e, i)
        e.stamp(8)
        e(f'v_and_b32 v{V}, 31, v{L}'); e(f'v_lshlrev_b32 v{V}, 7, v{V}')
        e(f's_lshl_b32 s{T}, s{K.sG}, 1'); e(f's_add_u32 s{T+2}, s{T}, s{K.sCG}'); e(f's_lshl_b32 s{T}, s{T+2}, 12'); e(f's_add_u32 s{T}, s{T}, {WS_KF:#x}')
        e(f'v_add_u32 v{K.vPO}, s{T}, v{V}')
        e(f'v_min_u32 v{V}, {16*128}, v{V}'); e(f'v_and_b32 v{V+1}, 32, v{L}'); e(f'v_lshl_add_u32 v{V}, v{V+1}, 1, v{V}')
        e(f's_lshl_b32 s{T+1}, s{T+2}, 13'); e(f's_add_u32 s{T+1}, s{T+1}, {WS_KV:#x}'); e(f's_add_u32 s{T+3}, s{T+1}, 4096')
        e(f's_lshl_b32 s{T+2}, s{T+2}, 17'); e(f's_add_u32 s{T+2}, s{T+2}, {WS_O:#x}')
        poll(e); e.stamp(9)
        KV = 200; C = 72
        for hd in range(2):
            for q in range(4): e(f'buffer_load_dwordx4 {vr(KV + 16*hd + 4*q, 4)}, v{V}, s[{K.WS}:{K.WS+3}], s{T+1+2*hd} offen offset:{16*q} sc1')
        for hd in range(2):
            for q in range(8): e(f'v_cvt_pk_bf16_f32 v{KV + 16*hd + q}, v{KV + 16*hd + 2*q}, v{KV + 16*hd + 2*q + 1}')
            for x in range(2):
                c = vr(C + 16*x, 16)
                for s in range(2): e(f'{MF} {c}, {vr(KV + 16*hd + 4*s, 4)}, {vr(PH + 8*(2*x + hd) + 4*s, 4)}, {c if s else 0}')
            for x in range(2):
                c = C + 16*x; o = 232 + 8*hd + 4*x
                e(f'v_add_f32 v{c+8}, 0x358637bd, v{c+8}'); e(f'v_rcp_f32 v{c+8}, v{c+8}')
                for q in range(8): e(f'v_mul_f32 v{c+q}, v{c+q}, v{c+8}')
                for q in range(4): e(f'v_cvt_pk_bf16_f32 v{o+q}, v{c+2*q}, v{c+2*q+1}')
                e(f'buffer_store_dwordx4 {vr(o, 4)}, v{K.vST+x}, s[{K.WS}:{K.WS+3}], s{T+2} offen sc1', tag='o')
            if hd == 0: e(f's_add_u32 s{T+2}, s{T+2}, 65536')
        e(f's_lshl_b32 s{T+1}, s{K.sR}, 3'); e(f's_add_u32 s{T+1}, s{T+1}, s{K.sG}'); e(f's_lshl_b32 s{T+1}, s{T+1}, 2')
        e(f's_add_u32 s{T+1}, s{T+1}, s{K.sA}'); e(f's_lshl_b32 s{T+1}, s{T+1}, 7')
        e.wait_tag('o'); flag(e, T+1, WS_OF)
    else:
        for i, (w, x) in enumerate(U): epi_p(e, K, A + 16*i, w, TP + 16*i, TP + 64 + 4*i)
        W = K.vWA; X = K.vXA
        e(f'v_and_b32 v{W}, 31, v{L}'); e(f'v_lshlrev_b32 v{W}, 6, v{W}'); e(f'v_lshrrev_b32 v{W+3}, 5, v{L}')
        e(f'v_and_b32 v{W+1}, 6, v{L}'); e(f'v_lshl_add_u32 v{W}, v{W+1}, 3, v{W}')
        e(f's_mul_i32 s{T}, s{K.sCG}, {40960 + 4096}'); e(f's_lshl_b32 s{T+1}, s{K.sTP}, 13'); e(f's_add_u32 s{T}, s{T}, s{T+1}')
        e(f'v_add_u32 v{W}, s{T}, v{W}')
        e(f'v_lshlrev_b32 v{W+1}, 5, v{W+3}'); e(f'v_xor_b32 v{X}, v{W+1}, v{W}'); e(f'v_xor_b32 v{X+1}, 4096, v{X}')
        e(f'v_xor_b32 v{X+2}, 16, v{X}'); e(f'v_xor_b32 v{X+3}, 16, v{X+1}')
        e(f'v_lshl_add_u32 v{X+4}, v{W+3}, 3, v{W}'); e(f'v_xor_b32 v{X+5}, 4096, v{X+4}')
        e(f'v_xor_b32 v{X+6}, 16, v{X+4}'); e(f'v_xor_b32 v{X+7}, 16, v{X+5}')
        e(f'v_lshlrev_b32 v{W+1}, 4, v{W+3}'); e(f'v_xor_b32 v{W+1}, v{W+1}, v{W}'); e(f'v_xor_b32 v{W+1}, 32, v{W+1}'); e(f'v_xor_b32 v{W+2}, 4096, v{W+1}')
        O = TP + 80
        for j in range(4): e(f'v_mov_b32 v{O+j}, 0x3f803f80')
        for i, (w, x) in enumerate(U):
            a = A + 16*i
            for j in range(4): e(f'v_cvt_pk_bf16_f32 v{a+8+j}, v{a+8+2*j}, v{a+9+2*j}')
            e(f'ds_write_b64 v{X+4+x}, {vr(a+8, 2)} offset:{w*20480 + 2048}')
            e(f'ds_write_b64 v{X+6+x}, {vr(a+10, 2)} offset:{w*20480 + 2048}')
            e(f'ds_write_b128 v{W+1+x}, {vr(O, 4)} offset:{w*20480 + 2048}')
        for i, (w, x) in enumerate(U):
            a = A + 16*i
            epi_softmax(e, K, TP + 16*i, V, a)
            e(f'ds_write_b128 v{X+x}, {vr(a, 4)} offset:{w*20480}')
            e(f'ds_write_b128 v{X+2+x}, {vr(a+4, 4)} offset:{w*20480}')
        e(f'v_bfe_u32 v{V}, v{L}, 2, 2'); e(f'v_lshl_add_u32 v{V}, v{W+3}, 3, v{V}'); e(f'v_lshlrev_b32 v{V}, 6, v{V}')
        e(f'v_and_b32 v{V+1}, 16, v{L}'); e(f'v_lshl_add_u32 v{V}, v{V+1}, 1, v{V}')
        e(f'v_and_b32 v{V+1}, 3, v{L}'); e(f'v_lshl_add_u32 v{V}, v{V+1}, 3, v{V}')
        e(f'v_and_b32 v{V+1}, 8, v{L}'); e(f'v_lshlrev_b32 v{V+1}, 1, v{V+1}'); e(f'v_xor_b32 v{V}, v{V}, v{V+1}')
        e(f'v_add_u32 v{X}, s{K.sREG}, v{V}'); e(f'v_xor_b32 v{X+1}, 32, v{X}')
        e(f'v_and_b32 v{V+1}, 31, v{L}'); e(f'v_lshlrev_b32 v{V+1}, 2, v{V+1}'); e(f'v_lshl_add_u32 v{V+1}, v{W+3}, 9, v{V+1}')
        e(f's_lshl_b32 s{T+1}, s{K.sG}, 2'); e(f's_add_u32 s{T+1}, s{T+1}, s{K.sA}'); e(f's_lshl_b32 s{T}, s{T+1}, 12'); e(f's_add_u32 s{T}, s{T}, {WS_KV:#x}')
        e(f's_lshl_b32 s{T+1}, s{T+1}, 4'); e(f's_add_u32 s{T+1}, s{T+1}, s{K.sR}'); e(f's_lshl_b32 s{T+1}, s{T+1}, 7')
        e.waitcnt(lg=0); e('s_barrier'); e.stamp(7)
        for k in range(8):
            for m in range(2):
                for r in range(2):
                    e(f'ds_read_b64_tr_b16 {vr(TP + 8*k + 4*m + 2*r, 2)}, v{X+r} offset:{(k >> 1)*4096 + m*2048 + ((k & 1)*16 + 4*r)*64}')
        for k in range(8):
            e(f'{MF} {vr(A, 16)}, {vr(TP + 8*k + 4, 4)}, {vr(TP + 8*k, 4)}, {vr(A, 16) if k else 0}')
        for j in range(8):
            e(f'buffer_atomic_add_f32 v{A+j}, v{V+1}, s[{K.WS}:{K.WS+3}], s{T} offen offset:{(8*(j >> 2) + (j & 3))*128}', tag='kv')
        e('s_mov_b32 exec_hi, 0')
        e(f'buffer_atomic_add_f32 v{A+8}, v{V+1}, s[{K.WS}:{K.WS+3}], s{T} offen offset:2048', tag='kv')
        e('s_mov_b64 exec, -1')
        run(W2)
        e.wait_tag('kv'); flag(e, T+1, WS_KF); e.stamp(8)
        hpoll(e); e.stamp(9)
        for i in range(11): aload(e, i)

def p2(e):
    def wread(i):
        b = K.W2 + (i & 1) * 8
        e.wait_tag(f'w{i}')
        for nt in range(2):
            for r in range(2):
                e(f'ds_read_b64_tr_b16 {vr(b + nt*4 + r*2, 2)}, v{K.vT0 + nt} offset:{(i % 10) * 2048 + r * 1024}', tag=f'r{i}')
    wread(0)
    for i in range(15):
        if i == OPT['opoll']:
            e.stamp(10); opoll(e); e.stamp(11)
            for j in range(11, 15): aload(e, j)
        if i + 1 < 15: wread(i + 1)
        if i < 5:
            e.wait_lg_tag(f'r{i}'); run(w2dma(e, i + 10))
        b = K.W2 + (i & 1) * 8
        for nt in range(2):
            for mt in range(2):
                acc = vr(K.A2 + (mt*2 + nt) * 16, 16)
                e(f'{MF} {acc}, {vr(K.AF + i*8 + mt*4, 4)}, {vr(b + nt*4, 4)}, {acc if i else 0}')
    e.stamp(12)
    e(f's_mov_b32 m0, s{K.sREG}')
    skew = [0, 272, 640, 912]
    for t in range(4):
        for j in range(16):
            e(f'ds_write_addtid_b32 v{K.A2 + t*16 + j} offset:{(t*4 + (j >> 2)) * 1280 + skew[j & 3]}')
    e(f'v_add_u32 v{K.vT0}, {3*20480}, v{K.vRd}'); e(f'v_add_u32 v{K.vT1}, {6*20480}, v{K.vRd}')
    e.waitcnt(lg=0); e('s_barrier')
    R = K.AF
    for w in range(8):
        a = [K.vRd, K.vT0, K.vT1][w // 3]
        for q in range(2): e(f'ds_read_b128 {vr(R + w*8 + q*4, 4)}, v{a} offset:{(w % 3) * 20480 + q*16}')
    S = K.A2
    for q in range(4):
        e(f'v_lshlrev_b32 v{S + 2*q}, 16, v{K.vX + q}'); e(f'v_and_b32 v{S + 2*q + 1}, 0xffff0000, v{K.vX + q}')
    for w in range(8):
        for q in range(8): e(f'v_add_f32 v{S + q}, v{S + q}, v{R + w*8 + q}')
    for q in range(4): e(f'v_cvt_pk_bf16_f32 v{S + 8 + q}, v{S + 2*q}, v{S + 2*q + 1}')
    e(f'buffer_store_dwordx4 {vr(S + 8, 4)}, v{K.vXo}, s[{K.OUT}:{K.OUT+3}], 0 offen')

def gen(name):
    Stream.TSB = 72
    e = Stream(); common(e, name)
    txt = e.text(); ends = []
    for role in range(4):
        f = e.fork()
        if role: f.label(f'{name}_r{role}')
        dm = prologue(f, role); main1(f, role, dm); f.stamp(6); epi1(f, role)
        if role < 3: f(f's_branch {name}_p2')
        ends.append(f); txt += f.text()
    f = ends[3].fork(); f.label(f'{name}_p2'); f.raw('  s_nop 7\n  s_nop 7')
    for g in (ends[0], ends[1]): assert [a for a, b in g.vm] == [a for a, b in f.vm]
    assert len(ends[2].vm) == 1
    p2(f)
    f(f's_or_b32 s{K.sT}, s2, s{K.sW}'); f(f's_cbranch_scc1 {name}_nb')
    f(f's_mov_b32 s{K.sT+1}, 0'); flag(f, K.sT+1, WS_EP)
    f.label(f'{name}_nb')
    f.stamp_flush(14, K.sWS, K.sW, WS_TS, v=2)
    f.label(f'{name}_end'); f('s_endpgm')
    return txt + f.text()

def full(): return wrap([(NAME + '_kernel', gen(NAME + '_kernel'), 512, 163840)])
if __name__ == '__main__':
    open('v2.s', 'w').write(full())
```

```python
import re, copy

def regs_of(tok):
    tok = tok.strip()
    neg = tok.lstrip('-').strip('|')
    m = re.fullmatch(r'([vsa])(\d+)', neg)
    if m: return [(m.group(1), int(m.group(2)))]
    m = re.fullmatch(r'([vsa])\[(\d+):(\d+)\]', neg)
    if m: return [(m.group(1), i) for i in range(int(m.group(2)), int(m.group(3)) + 1)]
    if neg == 'vcc': return [('vcc', 0)]
    if neg == 'exec': return [('exec', 0)]
    if neg == 'm0': return [('m0', 0)]
    return []

TRANS = ('v_exp_f32', 'v_log_f32', 'v_rcp_f32', 'v_rsq_f32', 'v_sqrt_f32')

class Ins:
    __slots__ = ('text', 'op', 'dst', 'src', 'cls', 'A', 'B', 'C', 'passes', 'lds', 'wide', 'dpp', 'states')
    def __init__(self, text):
        self.text = text
        t = text.split(';')[0].strip()
        parts = t.split(None, 1)
        op = parts[0]; self.op = op
        rest = parts[1] if len(parts) > 1 else ''
        ops = [o.strip() for o in rest.split(',')] if rest else []
        mods = ''
        if ops:
            last = ops[-1].split(None, 1)
            ops[-1] = last[0]
            mods = last[1] if len(last) > 1 else ''
        R = [regs_of(o) for o in ops]
        self.A = self.B = self.C = (); self.passes = 0; self.lds = False; self.wide = False
        self.dpp = ('row_' in mods or 'quad_perm' in mods or op.endswith('_dpp'))
        self.states = 1
        flat = lambda L: [r for x in L for r in x]
        if op.startswith('v_mfma'):
            self.cls = 'mfma'; self.dst = R[0]; self.A, self.B, self.C = R[1], R[2], R[3]
            self.src = flat(R[1:]); self.passes = 8 if '32x32x16' in op else 4
        elif op.startswith('v_'):
            self.cls = 'trans' if op.replace('_e32', '').replace('_e64', '') in TRANS else 'valu'
            if op.startswith('v_permlane') and 'swap' in op:
                self.dst = flat(R); self.src = flat(R)
            elif '_co_' in op:
                self.dst = R[0] + R[1]; self.src = flat(R[2:])
            else:
                self.dst = R[0] if R else []; self.src = flat(R[1:])
                if op.startswith(('v_fmac', 'v_dot2c', 'v_mac', 'v_pk_fmac')) or self.dpp: self.src = self.src + R[0]
                if op.startswith('v_cndmask') and len(ops) == 3: self.src = self.src + [('vcc', 0)]
        elif op.startswith('ds_'):
            self.cls = 'ds'
            if op.startswith(('ds_read', 'ds_bpermute', 'ds_swizzle', 'ds_permute')):
                self.dst = R[0]; self.src = flat(R[1:])
            else:
                self.dst = []; self.src = flat(R)
            if 'addtid' in op: self.lds = True
        elif op.startswith(('buffer_', 'global_')):
            self.cls = 'vmem'
            islds = (' lds' in ' ' + mods) or ('_lds_' in op)
            self.lds = islds
            if 'load' in op and not islds:
                self.dst = R[0]; self.src = flat(R[1:])
            elif 'atomic' in op and 'sc0' in mods:
                self.dst = R[0]; self.src = flat(R[1:]) if op.startswith('global_') else flat(R)
            else:
                self.dst = []; self.src = flat(R)
            if 'store' in op and ('x3' in op or 'x4' in op):
                self.wide = True
                self.C = R[0] if op.startswith('buffer_') else R[1]
        elif op.startswith(('s_load', 's_buffer_load', 's_memtime', 's_memrealtime')):
            self.cls = 'smem'; self.dst = R[0]; self.src = flat(R[1:])
        else:
            self.cls = 'salu'
            if op.startswith(('s_cmp', 's_waitcnt', 's_cbranch', 's_branch', 's_barrier', 's_nop', 's_endpgm', 's_sleep', 's_setprio', 's_bitcmp', 's_setpc')):
                self.dst = []; self.src = flat(R)
            else:
                self.dst = R[0] if R else []; self.src = flat(R[1:])
                if 'saveexec' in op: self.dst = self.dst + [('exec', 0)]
            if op == 's_nop': self.states = int(ops[0]) + 1

def need(p, c):
    n = 0
    pv = p.cls in ('valu', 'trans'); cv = c.cls in ('valu', 'trans')
    pd = set(p.dst)
    if pv:
        vd = {r for r in pd if r[0] == 'v'}; sd = pd - vd
        cs = set(c.src)
        if c.cls == 'mfma' and vd & cs: n = max(n, 2)
        if p.cls == 'trans' and c.cls in ('valu', 'vmem', 'ds') and vd & cs: n = max(n, 1)
        if cv and (c.op.startswith('v_permlane') or c.dpp) and vd & cs: n = max(n, 2)
        if cv and c.op.startswith(('v_readlane', 'v_readfirstlane')) and vd & cs: n = max(n, 1)
        if sd & cs:
            if cv: n = max(n, 4 if c.op.startswith(('v_readlane', 'v_writelane')) else 2)
            if c.cls == 'vmem': n = max(n, 5)
        if ('exec', 0) in pd: n = max(n, 5)
        if p.op.startswith('v_dot') and vd & (cs | set(c.dst)) and not (c.op == p.op): n = max(n, 3)
        if ('sdwa' in p.text or 'op_sel' in p.text) and cv and vd & (cs | set(c.dst)): n = max(n, 1)
    if p.cls == 'mfma':
        big = p.passes == 8
        if c.cls == 'mfma':
            if pd & (set(c.A) | set(c.B)): n = max(n, 12 if big else 8)
            if pd & set(c.C):
                if not (list(p.dst) == list(c.C) and p.passes == c.passes): n = max(n, 10 if big else 6)
            elif pd & set(c.dst): n = max(n, 12 if big else 8)
        elif cv or c.cls in ('ds', 'vmem'):
            if pd & (set(c.src) | set(c.dst)): n = max(n, 12 if big else 8)
            if set(p.C) & set(c.dst): n = max(n, 7 if big else 3)
    if p.cls == 'salu' and ('m0', 0) in pd and c.lds: n = max(n, 1)
    if p.wide and set(p.C) & set(c.dst): n = max(n, 2)
    return n

class Stream:
    def __init__(self):
        self.out = []
        self.hist = []
        self.vm = []
        self.lg = []
        self.smem = False
        self.nnop = 0
    def fork(self):
        s = Stream(); s.hist = list(self.hist); s.vm = list(self.vm); s.lg = list(self.lg); s.smem = self.smem
        return s
    def raw(self, text): self.out.append(text)
    def label(self, name): self.out.append(name + ':')
    def comment(self, t): self.out.append('  ; ' + t)
    def _emit(self, ins):
        d = 0; req = 0
        for p in reversed(self.hist):
            r = need(p, ins) - d
            if r > req: req = r
            d += p.states
            if d >= 12: break
        while req > 0:
            k = min(req, 16)
            nop = Ins(f's_nop {k-1}'); self.hist.append(nop); self.out.append('  ' + nop.text); req -= k; self.nnop += 1
        self.hist.append(ins); self.hist = self.hist[-14:]
        self.out.append('  ' + ins.text)
    def waitcnt(self, vm=None, lg=None):
        parts = []
        if vm is not None and vm < len(self.vm):
            vm = min(vm, 63); parts.append(f'vmcnt({vm})'); self.vm = self.vm[len(self.vm) - vm:] if vm else []
        if lg is not None and (lg < len(self.lg) or (lg == 0 and self.smem)):
            if self.smem: lg = 0
            lg = min(lg, 15); parts.append(f'lgkmcnt({lg})'); self.lg = self.lg[len(self.lg) - lg:] if lg else []
            if lg == 0: self.smem = False
        if parts: self._emit(Ins('s_waitcnt ' + ' '.join(parts)))
    def _pos(self, q, pred):
        last = -1
        for i, e in enumerate(q):
            if pred(e): last = i
        return None if last < 0 else len(q) - 1 - last
    def wait_tag(self, tag, lg=None):
        self.waitcnt(vm=self._pos(self.vm, lambda e: e[1] == tag), lg=lg)
    def wait_lg_tag(self, tag):
        self.waitcnt(lg=self._pos(self.lg, lambda e: e[1] == tag))
    def __call__(self, text, tag=None):
        ins = Ins(text)
        touch = set(ins.src) | set(ins.dst)
        v = self._pos(self.vm, lambda e: e[0] & touch)
        l = self._pos(self.lg, lambda e: e[0] & touch)
        if v is not None or l is not None: self.waitcnt(vm=v, lg=l)
        self._emit(ins)
        if ins.cls == 'vmem': self.vm.append((set(ins.dst), tag))
        elif ins.cls == 'ds': self.lg.append((set(ins.dst), tag))
        elif ins.cls == 'smem':
            self.lg.append((set(ins.dst), tag)); self.smem = True
    TS = False; TSB = 68; MASK = 0x7ff3
    def stamp(self, i):
        if Stream.TS: self(f's_mem{"" if Stream.TS == 2 else "real"}time s[{self.TSB+2*i}:{self.TSB+2*i+1}]')
    def stamp_flush(self, n, wsl, sw, off, v=250):
        if not Stream.TS: return
        self('s_mov_b64 exec, -1')
        self.waitcnt(vm=0); self.stamp(n - 1); self.waitcnt(lg=0)
        for i in range(n): self(f'v_writelane_b32 v{v}, s{self.TSB+2*i}, {i}')
        if Stream.TS == 3:
            self(f's_not_b32 s{self.TSB}, s{self.TSB}'); self(f'v_writelane_b32 v{v}, s{self.TSB}, {n}')
            self(f's_load_dwordx2 s[{self.TSB}:{self.TSB+1}], s[0:1], 72')
            self(f's_mov_b32 s{self.TSB+2}, 256'); self(f's_mov_b32 s{self.TSB+3}, 0x20000')
            self(f'v_and_b32 v{v+1}, 63, v0'); self(f'v_lshlrev_b32 v{v+1}, 2, v{v+1}')
            self(f's_mov_b64 exec, {Stream.MASK:#x}')
            self(f'buffer_atomic_umax v{v}, v{v+1}, s[{self.TSB}:{self.TSB+3}], 0 offen')
            return
        self(f's_add_u32 s{self.TSB}, s{wsl}, {off:#x}'); self(f's_addc_u32 s{self.TSB+1}, s{wsl+1}, 0')
        self(f's_mov_b32 s{self.TSB+2}, 0x20000'); self(f's_mov_b32 s{self.TSB+3}, 0x20000')
        self(f's_lshl_b32 s{self.TSB+4}, s2, 3'); self(f's_add_u32 s{self.TSB+4}, s{self.TSB+4}, s{sw}'); self(f's_lshl_b32 s{self.TSB+4}, s{self.TSB+4}, 6')
        self(f'v_and_b32 v{v+1}, 63, v0'); self(f'v_lshlrev_b32 v{v+1}, 2, v{v+1}')
        self('s_mov_b64 exec, 0xffff')
        self(f'buffer_store_dword v{v}, v{v+1}, s[{self.TSB}:{self.TSB+3}], s{self.TSB+4} offen')
    def lines(self, block):
        for l in block.strip().split('\n'):
            l = l.strip()
            if not l or l.startswith(';'): continue
            if l.endswith(':'): self.label(l[:-1])
            else: self(l)
    def text(self): return '\n'.join(self.out) + '\n'

def vr(a, n=1): return f'v{a}' if n == 1 else f'v[{a}:{a+n-1}]'
def sr(a, n=1): return f's{a}' if n == 1 else f's[{a}:{a+n-1}]'

def kernel_desc(name, vgpr=256, sgpr=102):
    return f""".amdhsa_kernel {name}
  .amdhsa_next_free_vgpr {vgpr}
  .amdhsa_next_free_sgpr {sgpr}
  .amdhsa_accum_offset {(vgpr+3)//4*4}
  .amdhsa_group_segment_fixed_size 0
  .amdhsa_kernarg_size 88
  .amdhsa_user_sgpr_count 2
  .amdhsa_user_sgpr_kernarg_segment_ptr 1
  .amdhsa_system_sgpr_workgroup_id_x 1
.end_amdhsa_kernel
"""
```

```python
import sys; sys.path.insert(0, 'work')
from asmlib import *
from gen import NAME, MF, srd, code_prefetch, wrap
MS = 'v_mfma_f32_16x16x32_bf16'
LOG2E = 0x3fb8aa3b
WS_H, WS_O, WS_CS, WS_KV, WS_KZ, WS_ST, WS_EP = 0, 0x600000, 0x800000, 0xA00000, 0xA80000, 0xA90000, 0xAF0000
WS_TS = 0xE00000; WS_HF = 0xB00000
NULLO = 0x800000
KSL = 32768; GSL = [131072, 0, 20736, 41472]; G5U = 10368
G6U = 12320; GSQ = [131072, 0, 24640]; QSL = [49280, 73856, 98432, 0, 24640]
PHL, CSL, STL, FLG, KVL = 155840, 157888, 159936, 160448, 131072
FR_, FF_, FA_ = 0, 1024, 2048
OPT0 = dict(rot=8, xo=1, dk=2, dq=3, db=5, lp=6, spin=0x40000, sm=0, prio=1, lak=8, laq=12, nf=8, ng=2, ngq=2, gs=2, g0=1, lj=5, ljq=5, nw1=0,
            pa=0, pb=2, npk=12, npq=12, ppk=12, eg=(4, 8, 12), lg=(4, 8, 10), lc=12, kd=0, qd=4, bp=8, fq=(), fk=(), rp=0, nw2=0, ge=1, pm=1,
            ka=48, ks=8, ci=2, cd=3, ciq=2, cdq=3); OPT = dict(OPT0)
NSTAMP = 14

class K:
    sRT, sCT, sOWN, sSO, sC0, sC1, sLX, sCS = 4, 5, 6, 7, 8, 9, 10, 11
    sTAG, sLD, sSP, sPH, sPL, sWG, sCH, sPOS = 12, 13, 14, 15, 16, 17, 18, 19
    sW, sR, sG, sTP, sCG, sC, sP, sA = 20, 21, 22, 23, 24, 25, 26, 27
    WS, H, WQ, GU, PH, WD, WO, XR, OUT = 28, 32, 36, 40, 44, 48, 52, 56, 60
    sBW, sBA = 36, 40
    sT = 64; sWS = 70
    vL, vDMA, vA, vT0, vT1, vXo, vPO, vX, vT, vFW, vFR, vST, vMS = 1, 2, 3, 4, 5, 6, 7, 8, 12, 16, 17, 18, 19
    ACC2, WR, AF = 32, 96, 192
T, V, L = K.sT, K.vT, K.vL
lab = [0]
def newlab(p='L'):
    lab[0] += 1; return f'{p}{lab[0]}'
def S4(d): return f's[{d}:{d+3}]'
def run(Ls):
    for a, b in Ls: a(); b()
nop = lambda: None
class Rec:
    def __init__(self): self.L = []
    def __call__(self, text, tag=None): self.L.append((text, tag))
    def groups(self):
        G = []; hold = False
        for i, (t, g) in enumerate(self.L):
            if hold or t.startswith('s_cselect'): G[-1].append((t, g))
            else: G.append([(t, g)])
            if t.startswith('s_cmp'): assert self.L[i+1][0].startswith('s_cselect')
            if 'exec' in t: hold = not t.endswith('exec, -1')
        return G
_st = Stream.stamp
def _stamp(e, i, mode=0):
    if i in (0, 1, 12, 13) or mode == OPT['sm']: _st(e, i)
Stream.stamp = _stamp

OOL = []
def probe_issue(e): e(f'buffer_load_dword v{V+3}, v{K.vPO}, {S4(K.WS)}, 0 offen sc1', tag='poll')
def probe_check(e, n):
    Lb = newlab('pb')
    chk = [f'v_subrev_u32 v{V+2}, s{T}, v{V+3}', f'v_cmp_lt_u32 vcc, 7, v{V+2}']
    e(f's_add_u32 s{T}, s{K.sTAG}, {n}')
    for t in chk: e(t)
    e.raw('  s_nop 1'); e(f's_cbranch_vccnz {Lb}'); e.label(Lb + 'x')
    OOL.append(f"""{Lb}:
  s_mov_b32 s{K.sSP}, {OPT["spin"]:#x}
{Lb}l:
  buffer_load_dword v{V+3}, v{K.vPO}, {S4(K.WS)}, 0 offen sc1
  s_sub_u32 s{K.sSP}, s{K.sSP}, 1
  s_waitcnt vmcnt(0)
  s_cbranch_scc1 {Lb}x
  {chk[0]}
  {chk[1]}
  s_nop 1
  s_cbranch_vccnz {Lb}l
  s_branch {Lb}x
""")
def pflag(e, n, tag):
    e(f's_add_u32 s{T}, s{K.sTAG}, {n}'); e(f'v_mov_b32 v{V+2}, s{T}')
    e(f's_lshl3_add_u32 s{T}, s{K.sWG}, s{K.sW}'); e(f's_lshl_b32 s{T}, s{T}, 7'); e(f's_add_u32 s{T}, s{T}, {WS_HF:#x}')
    e.wait_tag(tag)
    e('s_mov_b64 exec, 1')
    e(f'buffer_store_dword v{V+2}, off, {S4(K.WS)}, s{T} sc1')
    e('s_mov_b64 exec, -1')
def maxchain(regs, t):
    o = []; r = list(regs); first = [True, True]; k = 0
    while r:
        a = t + (k & 1)
        if first[k & 1]: o.append(f'v_max3_u32 v{a}, v{r[0]}, v{r[1]}, v{r[2]}'); r = r[3:]; first[k & 1] = False
        elif len(r) >= 2: o.append(f'v_max3_u32 v{a}, v{a}, v{r[0]}, v{r[1]}'); r = r[2:]
        else: o.append(f'v_max_u32 v{a}, v{a}, v{r[0]}'); r = r[1:]
        k += 1
    return o + [f'v_max_u32 v{t}, v{t}, v{t+1}', f'v_cmp_eq_u32 vcc, -1, v{t}']
def verify(e, chk, reload, redo=None, inl=True):
    Lb = newlab('vf')
    if inl:
        for t in chk: e(t)
    e.raw('  s_nop 1'); e(f's_cbranch_vccnz {Lb}'); e.label(Lb + 'x')
    o = [f'{Lb}:', f'  s_mov_b32 s{K.sSP}, {OPT["spin"]:#x}', '  s_nop 7', '  s_nop 7', f'{Lb}l:'] + ['  ' + t for t in reload]
    o += [f'  s_sub_u32 s{K.sSP}, s{K.sSP}, 1', '  s_waitcnt vmcnt(0)', f'  s_cbranch_scc1 {Lb}r'] + ['  ' + t for t in chk]
    o += ['  s_nop 1', f'  s_cbranch_vccnz {Lb}l', f'{Lb}r:']
    if redo:
        f = Stream()
        for t in redo: f(t)
        o += [f.text().rstrip('\n'), '  s_nop 7', '  s_nop 7']
    OOL.append('\n'.join(o + [f'  s_branch {Lb}x', '']))
def flag(e, sidx, base):
    e(f'v_mov_b32 v{V+2}, s{K.sTAG}'); e(f's_add_u32 s{T}, s{sidx}, {base:#x}')
    e('s_mov_b64 exec, 1')
    e(f'buffer_store_dword v{V+2}, off, {S4(K.WS)}, s{T} sc1')
    e('s_mov_b64 exec, -1')
def gran_check(e, loads, tags, t):
    def chk(f):
        f(f'v_xor_b32 v{t}, s{K.sTAG}, v{tags[0]}')
        for g in tags[1:]:
            f(f'v_xor_b32 v{t+1}, s{K.sTAG}, v{g}'); f(f'v_or_b32 v{t}, v{t}, v{t+1}')
        f(f'v_cmp_ne_u32 vcc, 0, v{t}')
    Lb = newlab('gr')
    chk(e); e.raw('  s_nop 1'); e(f's_cbranch_vccz {Lb}x'); e(f's_mov_b32 s{K.sSP}, {OPT["spin"]:#x}')
    e.label(Lb)
    for l in loads: e.raw('  ' + l)
    e.raw(f'  s_sub_u32 s{K.sSP}, s{K.sSP}, 1\n  s_waitcnt vmcnt(0)\n  s_cbranch_scc1 {Lb}x')
    chk(lambda s: e.raw('  ' + s)); e.raw(f'  s_nop 1\n  s_cbranch_vccnz {Lb}')
    e.label(Lb + 'x')
def larrive(e, kind, val):
    e(f'v_mov_b32 v{V}, {val}'); e(f'ds_write_b32 v{K.vFW}, v{V} offset:{kind}')
def lissue(e, kind, t): e(f'ds_read_b32 v{t}, v{K.vFR} offset:{kind}')
def lcheck(e, kind, val, t):
    Lb = newlab('lw')
    e(f'v_cmp_gt_u32 vcc, {val}, v{t}'); e.raw('  s_nop 1'); e(f's_cbranch_vccz {Lb}x'); e(f's_mov_b32 s{K.sSP}, {OPT["spin"]:#x}')
    e.label(Lb)
    e.raw(f'  ds_read_b32 v{t}, v{K.vFR} offset:{kind}\n  s_sub_u32 s{K.sSP}, s{K.sSP}, 1\n  s_waitcnt lgkmcnt(0)\n  s_cbranch_scc1 {Lb}x')
    e.raw(f'  v_cmp_gt_u32 vcc, {val}, v{t}\n  s_nop 1\n  s_cbranch_vccnz {Lb}')
    e.label(Lb + 'x')
def lwait(e, kind, val, t): lissue(e, kind, t); lcheck(e, kind, val, t)
def drain_lg(e):
    e.raw('  s_waitcnt lgkmcnt(0)'); e.lg = []; e.smem = False

def common(e, name):
    e('s_cmp_ge_u32 s2, 256'); e(f's_cbranch_scc1 {name}_end')
    e.stamp(0)
    for d, o in ((K.XR, 0), (K.WQ, 8)): e(f's_load_dwordx2 s[{d}:{d+1}], s[0:1], {o}')
    e(f's_load_dwordx4 {S4(K.GU)}, s[0:1], 40')
    for d, o in ((K.sWS, 80), (K.WS, 80), (K.H, 80), (K.PH, 16), (K.WO, 24), (K.WD, 56), (K.OUT, 64)): e(f's_load_dwordx2 s[{d}:{d+1}], s[0:1], {o}')
    e(f'v_lshrrev_b32 v{V}, 6, v0'); e(f'v_and_b32 v{L}, 63, v0'); e(f'v_readfirstlane_b32 s{K.sW}, v{V}')
    e(f's_bfe_u32 s{T+2}, s2, 0x30003'); e(f's_lshr_b32 s{T+1}, s2, 6')
    e(f's_and_b32 s{K.sR}, s2, 1'); e(f's_lshl_b32 s{K.sR}, s{K.sR}, 3'); e(f's_add_u32 s{K.sR}, s{K.sR}, s{T+2}')
    rot = OPT['rot']; lg = rot.bit_length() - 1
    e(f's_lshr_b32 s{K.sPOS}, s{T+2}, {lg}'); e(f's_and_b32 s{K.sCH}, s{T+2}, {rot-1}'); e(f's_lshl_b32 s{K.sCH}, s{K.sCH}, {3-lg}')
    if OPT['xo']: e(f's_lshl1_add_u32 s{K.sCH}, s{T+1}, s{K.sCH}')
    e(f's_and_b32 s{K.sC}, s2, 6'); e(f's_lshl1_add_u32 s{K.sC}, s{K.sC}, s{T+1}')
    e(f's_lshr_b32 s{K.sG}, s{K.sC}, 1'); e(f's_and_b32 s{T+3}, s{K.sC}, 1')
    e(f's_mul_i32 s{K.sP}, s{K.sG}, 11'); e(f's_min_u32 s{K.sP}, s{K.sP}, 75')
    e(f's_and_b32 s{T+2}, s{K.sP}, 1'); e(f's_sub_u32 s{T+4}, 6, s{T+3}')
    e(f's_cmp_eq_u32 s{T+2}, s{T+3}'); e(f's_cselect_b32 s{T+4}, s{T+4}, 0'); e(f's_add_u32 s{K.sP}, s{K.sP}, s{T+4}')
    e(f's_and_b32 s{K.sTP}, s{K.sW}, 1'); e(f's_bfe_u32 s{K.sCG}, s{K.sW}, 0x10001'); e(f's_and_b32 s{K.sA}, s{K.sW}, 3')
    for d, n in ((K.XR, 2048*1024), (K.WQ, 512*3072)):
        e(f's_mov_b32 s{d+2}, {n:#x}'); e(f's_mov_b32 s{d+3}, 0x20000')
    e(f's_lshr_b32 s{T+2}, s{K.sW}, 2'); e(f's_lshl1_add_u32 s{T+2}, s{T+3}, s{T+2}')
    for r in (3, 0, 2): e(f's_cmp_eq_u32 s{T+2}, {r}'); e(f's_cbranch_scc1 {name}_r{r}')
def common2(e):
    for d, n in ((K.WS, 0x1000000), (K.H, 86*65536), (K.PH, 32*512), (K.WO, 512*1024), (K.WD, 1376*1024), (K.OUT, 2048*1024)):
        e(f's_mov_b32 s{d+2}, {n:#x}'); e(f's_mov_b32 s{d+3}, 0x20000')
    e(f's_lshl4_add_u32 s{K.sWG}, s{K.sR}, s{K.sC}')
    e(f's_and_b32 s{T}, s2, 7'); e(f's_bfe_u32 s{T+2}, s2, 0x20003'); e(f's_lshl2_add_u32 s{K.sRT}, s{T}, s{T+2}'); e(f's_lshr_b32 s{K.sCT}, s2, 5')
def tag_load(e): e(f's_mov_b32 s{T}, {WS_EP:#x}'); e(f's_load_dword s{K.sTAG}, s[{K.sWS}:{K.sWS+1}], s{T}')
def tag_mix(e): e(f's_mul_i32 s{K.sTAG}, s{K.sTAG}, 1664525'); e(f's_add_u32 s{K.sTAG}, s{K.sTAG}, 1013904223')
def code_pf(e, name, v):
    Z = newlab('pf')
    e(f's_cmp_lg_u32 s{K.sW}, 3'); e(f's_cbranch_scc1 {Z}')
    f = e.fork()
    f('s_getpc_b64 s[100:101]'); f.label(Z + 'pc')
    f(f's_bfe_u32 s{T}, s2, 0x30003'); f(f's_lshl_b32 s{T}, s{T}, 13')
    f(f'v_lshl_add_u32 v{v}, v{L}, 7, s{T}'); f(f'v_min_u32 v{v}, {name}_end-{name}, v{v}')
    f(f's_sub_u32 s100, s100, {Z}pc-{name}'); f('s_subb_u32 s101, s101, 0')
    f(f'global_load_dword v{v+1}, v{v}, s[100:101]')
    e.raw(f.text().rstrip('\n')); e.label(Z)

def row_load(e, X, adr):
    e(f's_lshl2_add_u32 s{T}, s{K.sWG}, s{K.sA}'); e(f's_lshl_b32 s{T}, s{T}, 11')
    e(f'v_lshrrev_b32 v{adr+1}, 5, v{L}'); e(f'v_lshlrev_b32 v{adr}, 4, v{L}'); e(f'v_lshl_add_u32 v{adr}, v{adr+1}, 9, v{adr}')
    for q in range(2): e(f'buffer_load_dwordx4 {vr(X + 4*q, 4)}, v{adr}, {S4(K.XR)}, s{T} offen offset:{512*q}', tag='row')
    e(f'v_lshlrev_b32 v{adr+1}, 3, v{adr+1}')

def misc_setup(e, isB):
    e(f's_mov_b32 s{K.sPH}, 0x03020302'); e(f's_mov_b32 s{K.sPL}, 0x01000100')
    e(f's_lshr_b32 s{T}, s{K.sR}, 3'); e(f's_lshl_b32 s{T}, s{T}, 4'); e(f's_add_u32 s{T}, s{T}, s{K.sC}')
    e(f's_mul_i32 s{T}, s{T}, {9*2048}'); e(f's_add_u32 s{K.sCS}, s{T}, {WS_CS:#x}')
    e(f's_lshl_b32 s{T}, s{K.sA}, 8'); e(f's_add_u32 s{T}, s{T}, {FLG}'); e(f'v_lshlrev_b32 v{K.vFW}, 2, v{L}'); e(f'v_add_u32 v{K.vFW}, s{T}, v{K.vFW}')
    e(f'v_and_b32 v{K.vFR}, 3, v{L}'); e(f'v_mul_u32_u24 v{K.vFR}, 260, v{K.vFR}'); e(f'v_add_u32 v{K.vFR}, {FLG}, v{K.vFR}')
    e(f'v_mov_b32 v{V}, 0')
    for k in ((FR_, FF_) if isB else (FA_,)): e(f'ds_write_b32 v{K.vFW}, v{V} offset:{k}')
    e(f's_lshl_b32 s{T}, s{K.sR}, 2')
    if isB: e(f's_add_u32 s{T}, s{T}, s{K.sA}')
    else: e(f's_lshl_b32 s{T+1}, s{K.sTP}, 1'); e(f's_add_u32 s{T}, s{T}, s{T+1}')
    e(f's_lshl_b32 s{T}, s{T}, 10'); e(f'v_lshlrev_b32 v{K.vST}, 4, v{L}'); e(f'v_add_u32 v{K.vST}, s{T}, v{K.vST}')

def p2_setup(e, area, V=V):
    e(f's_lshl_b32 s{K.sOWN}, s{K.sA}, 11')
    if area: e(f's_add_u32 s{K.sOWN}, s{K.sOWN}, {area}')
    e(f'v_lshrrev_b32 v{V}, 3, v{L}'); e(f'v_and_b32 v{V+1}, 7, v{L}')
    e(f'v_lshlrev_b32 v{K.vDMA}, 1, v{V}'); e(f'v_and_b32 v{K.vDMA}, 4, v{K.vDMA}')
    e(f'v_xor_b32 v{K.vDMA}, v{K.vDMA}, v{V+1}'); e(f'v_lshlrev_b32 v{K.vDMA}, 4, v{K.vDMA}')
    e(f'v_lshl_add_u32 v{K.vDMA}, v{V}, 10, v{K.vDMA}')
    e(f's_lshl_b32 s{T}, s{K.sCT}, 7'); e(f'v_add_u32 v{K.vDMA}, s{T}, v{K.vDMA}')
    e(f'v_lshlrev_b32 v{K.vXo}, 4, v{V+1}'); e(f'v_lshl_add_u32 v{K.vXo}, v{V}, 10, v{K.vXo}')
    e(f's_lshl_b32 s{T+1}, s{K.sRT}, 16'); e(f's_add_u32 s{T}, s{T}, s{T+1}')
    e(f's_lshl_b32 s{T+1}, s{K.sW}, 13'); e(f's_add_u32 s{T}, s{T}, s{T+1}')
    e(f'v_add_u32 v{K.vXo}, s{T}, v{K.vXo}')
    e(f's_lshl_b32 s{T}, s{K.sRT}, 11'); e(f'v_lshlrev_b32 v{K.vA}, 4, v{L}'); e(f'v_add_u32 v{K.vA}, s{T}, v{K.vA}')
    T0, T1 = K.vT0, K.vT1
    e(f'v_lshrrev_b32 v{T0}, 5, v{L}'); e(f'v_lshlrev_b32 v{T0}, 9, v{T0}')
    e(f'v_bfe_u32 v{T1}, v{L}, 2, 2'); e(f'v_lshl_add_u32 v{T0}, v{T1}, 7, v{T0}')
    e(f'v_and_b32 v{T1}, 8, v{L}'); e(f'v_lshl_add_u32 v{T0}, v{T1}, 3, v{T0}')
    e(f'v_and_b32 v{T1}, 16, v{L}'); e(f'v_lshl_add_u32 v{T0}, v{T1}, 1, v{T0}')
    e(f'v_and_b32 v{T1}, 3, v{L}'); e(f'v_lshl_add_u32 v{T0}, v{T1}, 3, v{T0}')
    e(f'v_add_u32 v{T0}, s{K.sOWN}, v{T0}'); e(f'v_xor_b32 v{T1}, 64, v{T0}')

def wsum(e, s, t):
    for d in (8, 4, 2, 1): e(f'v_add_f32_dpp v{s}, v{s}, v{s} row_ror:{d} row_mask:0xf bank_mask:0xf')
    e(f'v_mov_b32 v{t}, v{s}'); e(f'v_permlane16_swap_b32 v{s}, v{t}'); e(f'v_add_f32 v{s}, v{s}, v{t}')
def stats(e, X, adr, wt=True):
    B, S = X + 8, X + 24
    tag_mix(e)
    e(f's_lshl2_add_u32 s{T+1}, s{K.sWG}, s{K.sA}'); e(f's_lshl_b32 s{T+1}, s{T+1}, 4'); e(f's_add_u32 s{T+1}, s{T+1}, {WS_ST:#x}')
    for q in range(8):
        e(f'v_lshlrev_b32 v{B+2*q}, 16, v{X+q}'); e(f'v_and_b32 v{B+2*q+1}, 0xffff0000, v{X+q}')
    e(f'v_add_f32 v{S}, v{B}, v{B+1}'); e(f'v_add_f32 v{S+1}, v{B+2}, v{B+3}')
    for q in range(4, 16): e(f'v_add_f32 v{S+(q&1)}, v{S+(q&1)}, v{B+q}')
    e(f'v_add_f32 v{S}, v{S}, v{S+1}')
    wsum(e, S, S+1)
    e(f'v_mul_f32 v{S+1}, 0xbb000000, v{S}')
    for q in range(16): e(f'v_add_f32 v{B+q}, v{B+q}, v{S+1}')
    e(f'v_mul_f32 v{S}, v{B}, v{B}'); e(f'v_mul_f32 v{S+2}, v{B+1}, v{B+1}')
    for q in range(2, 16): e(f'v_fmac_f32 v{S+2*(q&1)}, v{B+q}, v{B+q}')
    e(f'v_add_f32 v{S}, v{S}, v{S+2}')
    wsum(e, S, S+2)
    e(f'v_mul_f32 v{S}, 0x3b000000, v{S}'); e(f'v_cvt_pk_bf16_f32 v{S}, v{S}, v{S}'); e(f'v_lshlrev_b32 v{S}, 16, v{S}')
    e(f'v_add_f32 v{S}, 0x3727c5ac, v{S}'); e(f'v_cvt_pk_bf16_f32 v{S}, v{S}, v{S}'); e(f'v_lshlrev_b32 v{S}, 16, v{S}')
    e(f'v_sqrt_f32 v{S}, v{S}')
    e(f'v_cvt_pk_bf16_f32 v{S}, v{S}, v{S+1}'); e(f'v_mov_b32 v{S+1}, s{K.sTAG}')
    if wt: e.raw('  s_waitcnt vmcnt(0)'); e.vm = []
    e('s_mov_b32 exec_lo, 1'); e('s_mov_b32 exec_hi, 1')
    e(f'buffer_store_dwordx2 {vr(S, 2)}, v{adr+1}, {S4(K.WS)}, s{T+1} offen sc1')
    e('s_mov_b64 exec, -1')

def xaddr(e, d, stile_shift):
    e(f'v_and_b32 v{V}, 31, v{L}'); e(f'v_bfe_u32 v{V+1}, v{L}, 1, 3'); e(f'v_lshrrev_b32 v{V+2}, 5, v{L}')
    e(f'v_xor_b32 v{V+1}, v{V+1}, v{V+2}'); e(f'v_lshlrev_b32 v{V+1}, 4, v{V+1}'); e(f'v_lshl_add_u32 v{V+1}, v{V}, 7, v{V+1}')
    if stile_shift: e(f's_lshl_b32 s{T}, s{stile_shift[0]}, {stile_shift[1]}'); e(f'v_add_u32 v{d}, s{T}, v{V+1}')
    else: e(f'v_mov_b32 v{d}, v{V+1}')
    for i in range(1, 4): e(f'v_xor_b32 v{d+i}, {i*32}, v{d}')
def wparts(e):
    e(f'v_lshrrev_b32 v{V+2}, 5, v{L}'); e(f'v_bfe_u32 v{V}, v{L}, 2, 2'); e(f'v_lshl_add_u32 v{V}, v{V+2}, 3, v{V}')
    e(f'v_and_b32 v{V+1}, 3, v{L}'); e(f'v_lshlrev_b32 v{V+1}, 3, v{V+1}'); e(f'v_bfe_u32 v{V+2}, v{L}, 4, 1')
def w128(e, d):
    e(f'v_lshl_add_u32 v{d}, v{V}, 7, v{V+1}'); e(f'v_and_b32 v{V+3}, 8, v{L}')
    e(f'v_lshl_add_u32 v{d}, v{V+3}, 3, v{d}'); e(f'v_lshl_add_u32 v{d}, v{V+2}, 5, v{d}')
def wgu(e, d, rs, uo):
    e(f'v_mul_u32_u24 v{d}, {rs}, v{V}'); e(f'v_mul_u32_u24 v{V+3}, {uo}, v{V+2}'); e(f'v_add3_u32 v{d}, v{d}, v{V+1}, v{V+3}')
def phi_frags(e, d, nh, sbase):
    e(f'v_bfe_u32 v{V}, v{L}, 2, 2'); e(f'v_lshlrev_b32 v{V}, 5, v{V}')
    e(f'v_and_b32 v{V+1}, 32, v{L}'); e(f'v_lshl_add_u32 v{V}, v{V+1}, 2, v{V}')
    e(f'v_and_b32 v{V+1}, 16, v{L}'); e(f'v_add_u32 v{V}, v{V}, v{V+1}')
    e(f'v_and_b32 v{V+1}, 2, v{L}'); e(f'v_lshl_add_u32 v{V}, v{V+1}, 2, v{V}')
    e(f'v_add_u32 v{V}, {sbase}, v{V}')
    for hd in range(nh):
        for r in range(2): e(f'ds_read_b64_tr_b16 {vr(d + 4*hd + 2*r, 2)}, v{V} offset:{hd*512 + r*256}')
    e(f'v_and_b32 v{V+1}, 4, v{L}'); e(f'v_cmp_ne_u32 vcc, 0, v{V+1}'); e(f'v_mov_b32 v{V+1}, 0x80008000'); e(f'v_cndmask_b32 v{V+1}, 0, v{V+1}, vcc')
    for i in range(4*nh): e(f'v_xor_b32 v{d+i}, v{V+1}, v{d+i}')

def derive(f, ms, M, s, c, neg, r=None):
    if r is None: r = c
    return [f'v_lshlrev_b32 v{s}, 16, v{ms}', f'v_rcp_f32 v{r}, v{s}', f'v_perm_b32 v{M}, v{ms}, v{ms}, s{K.sPH}',
            f'v_mul_f32 v{c}, {LOG2E | (0x80000000 if neg else 0):#x}, v{r}']
def idsel(t, IDs):
    su = [f'v_lshrrev_b32 v{t}, 3, v{L}', f'v_and_b32 v{t}, 4, v{t}', f'v_xor_b32 v{t}, v{t}, v{L}', f'v_and_b32 v{t}, 30, v{t}',
          f'v_and_b32 v{t+1}, 1, v{L}', f'v_lshlrev_b32 v{t+1}, 4, v{t+1}', f'v_mov_b32 v{t+2}, 0x3f80', f'v_lshlrev_b32 v{t+1}, v{t+1}, v{t+2}']
    for s, ID in enumerate(IDs):
        for j, c in enumerate((0, 2, 8, 10)): su += [f'v_cmp_eq_u32 vcc, {c + 16*s}, v{t}', f'v_cndmask_b32 v{ID+j}, 0, v{t+1}, vcc']
    return su

def mkdma(e, v, srdn, sb, add, sld, lds, tag, pre0=None, sc=''):
    def pre():
        if pre0: pre0()
        e(f's_add_u32 m0, s{sld}, {lds}'); e(f's_add_u32 s{K.sSO}, s{sb}, {add}')
    return (pre, lambda: e(f'buffer_load_dwordx4 v{v}, {S4(srdn)}, s{K.sSO} offen{sc} lds', tag=tag))

def epi_gu(e, a, t, s, nc, stile, add, off, dm=(), tag='h'):
    for j in range(8): e(f'v_mul_f32 v{t+j}, v{nc}, v{a+j}')
    run(dm[0:1])
    for j in range(8): e(f'v_exp_f32 v{t+j}, v{t+j}')
    run(dm[1:2])
    for j in range(8): e(f'v_fma_f32 v{t+j}, v{t+j}, v{s}, v{s}')
    run(dm[2:3])
    for j in range(8): e(f'v_rcp_f32 v{t+j}, v{t+j}')
    run(dm[3:])
    for j in range(8): e(f'v_mul_f32 v{t+j}, v{t+j}, v{a+8+j}')
    for j in range(4): e(f'v_cvt_pk_bf16_f32 v{a+j}, v{t+2*j}, v{t+2*j+1}')
    e(f's_add_u32 s{T}, s{stile}, {add*65536}')
    e(f'buffer_store_dwordx4 {vr(a, 4)}, v{K.vST}, {S4(K.H)}, s{T} offen offset:{off} sc1', tag=tag)
def epi_p(e, src, ph, p, t):
    for j in range(4): e(f'v_cvt_pk_bf16_f32 v{t+j}, v{src+2*j}, v{src+2*j+1}')
    e(f'{MF} {vr(p, 16)}, {vr(ph, 4)}, {vr(t, 4)}, 0')
def softmax(e0, p, t, o, c, s=None, fl=(), at=0, step=4):
    e = Rec()
    e(f'v_max3_f32 v{t}, v{p}, v{p+1}, v{p+2}'); e(f'v_max3_f32 v{t+1}, v{p+3}, v{p+4}, v{p+5}')
    for j in range(6, 16, 4):
        e(f'v_max3_f32 v{t}, v{t}, v{p+j}, v{p+j+1}')
        if j + 2 < 16: e(f'v_max3_f32 v{t+1}, v{t+1}, v{p+j+2}, v{p+j+3}')
    e(f'v_max_f32 v{t}, v{t}, v{t+1}'); e(f'v_mul_f32 v{t}, v{c}, v{t}')
    for j in range(16): e(f'v_fma_f32 v{p+j}, v{p+j}, v{c}, -v{t}')
    for j in range(16): e(f'v_exp_f32 v{p+j}, v{p+j}')
    e(f'v_add_f32 v{t}, v{p}, v{p+1}'); e(f'v_add_f32 v{t+1}, v{p+2}, v{p+3}')
    for j in range(4, 16, 2):
        e(f'v_add_f32 v{t}, v{t}, v{p+j}'); e(f'v_add_f32 v{t+1}, v{t+1}, v{p+j+1}')
    e(f'v_add_f32 v{t}, v{t}, v{t+1}')
    if s is not None: e(f'v_mul_f32 v{t}, v{t}, v{s}')
    e(f'v_rcp_f32 v{t}, v{t}')
    for j in range(16): e(f'v_mul_f32 v{p+j}, v{p+j}, v{t}')
    for j in range(8): e(f'v_cvt_pk_bf16_f32 v{o+j}, v{p+2*j}, v{p+2*j+1}')
    if isinstance(fl, dict):
        for k, (x, g) in enumerate(e.L):
            for f in fl.pop(k, []): f()
            e0(x)
        assert not fl
        return
    fl = list(fl)
    for k, (x, g) in enumerate(e.L):
        if fl and k >= at and (k - at) % step == 0: fl.pop(0)()
        e0(x)
    for f in fl: f()
def cs_loads(vad, ld, sregs):
    return [f'buffer_load_dwordx2 {vr(ld + 8*k + 2*i, 2)}, v{vad}, {S4(K.WS)}, s{s} offen offset:{256*i} sc1' for k, s in enumerate(sregs) for i in range(4)]
def cs_deliver(e, ld, t, dsts):
    for k, (va, off) in enumerate(dsts):
        b = ld + 8*k
        e(f'v_add_f32 v{b}, v{b}, v{b+2}'); e(f'v_add_f32 v{b+4}, v{b+4}, v{b+6}'); e(f'v_add_f32 v{b}, v{b}, v{b+4}')
        e(f'v_cvt_pk_bf16_f32 v{t}, v{b}, v{b}'); e(f'v_and_b32 v{t}, 0xffff0000, v{t}'); e(f'v_sub_f32 v{b}, v{b}, v{t}')
        e(f'v_cvt_pk_bf16_f32 v{b}, v{t}, v{b}'); e(f'ds_write_b32 v{va}, v{b} offset:{off}')

sE0, sE1, sL0, sL1, sLn = 36, 37, 38, 39, 40
def g2a_bases(e):
    U = 1 << 14
    e(f's_mul_i32 s{sE0}, s{K.sA}, {22*U}'); e(f's_add_u32 s{sE1}, s{sE0}, {16*U}'); e(f's_min_u32 s{sE1}, s{sE1}, {80*U}')
    e(f's_add_u32 s{sL0}, s{sE0}, {6*U}'); e(f's_sub_u32 s{sL1}, s{sE1}, {5*U}')
    e(f's_cmp_eq_u32 s{K.sA}, 3'); e(f's_cselect_b32 s{sLn}, {NULLO:#x}, s{sL1}')
def g2b_bases(e): e(f's_lshl_b32 s{sE0}, s{K.sA}, 17')
def stepu(i, isB):
    if isB: return sE0, i
    if i < 12: return (sE0, sE1)[i & 1], i >> 1
    k = i - 12
    return (sL0 if not k & 1 else sLn if k < 4 else sL1), k >> 1
def afr(i): return K.AF + 8*(i % 8 if i < 20 else i - 22)
def wrr(i): return K.WR + 8*(i % 12)
def w2dma(e, i, isB=False):
    b, u = stepu(i, isB)
    return [mkdma(e, K.vDMA, K.WO if isB else K.WD, b, u*16384 + hf*8192, K.sOWN, (i % 8)*8192 + hf*1024, f'w{i}') for hf in range(2)]
def aload_t(i, isB):
    b, u = stepu(i, isB)
    return [f's_lshl2_add_u32 s{T}, s{b}, {u*65536 + (WS_O if isB else 0):#x}'] + \
        [f'buffer_load_dwordx4 {vr(afr(i) + mt*4, 4)}, v{K.vA}, {S4(K.WS if isB else K.H)}, s{T} offen offset:{mt*1024} sc1' for mt in range(2)]
def aload(e, i, isB=False):
    for t in aload_t(i, isB): e(t)
def wread(e, i):
    e.wait_tag(f'w{i}')
    for nt in range(2):
        for r in range(2):
            e(f'ds_read_b64_tr_b16 {vr(wrr(i) + nt*4 + r*2, 2)}, v{K.vT0 + nt} offset:{(i % 8)*8192 + r*1024}', tag=f'r{i}')
def mf2(e, i, isB=False):
    for nt, mt in ((0, 0), (1, 0), (1, 1), (0, 1)):
        acc = vr(K.ACC2 + (mt*2 + nt)*16, 16)
        e(f'{MF} {acc}, {vr(wrr(i) + nt*4, 4)}, {vr(afr(i) + mt*4, 4)}, {acc if i else 0}')
def probe_addr(e, kind):
    if kind == 'z':
        e(f'v_and_b32 v{V}, 15, v{L}'); e(f's_lshl4_add_u32 s{T}, s{K.sG}, s{K.sA}'); e(f's_lshl_b32 s{T}, s{T}, 7'); e(f's_add_u32 s{T}, s{T}, {WS_HF:#x}')
        e(f'v_lshl_add_u32 v{K.vPO}, v{V}, 14, s{T}')
        return
    e(f'v_and_b32 v{V}, 1, v{L}'); e(f'v_lshlrev_b32 v{V}, {8 if kind == "o" else 7}, v{V}'); e(f'v_and_b32 v{V+1}, 2, v{L}'); e(f'v_lshl_add_u32 v{V}, v{V+1}, 10, v{V}')
    e(f's_lshr_b32 s{T}, s{K.sRT}, 1'); e(f's_lshl2_add_u32 s{T}, s{T}, s{K.sA}'); e(f's_lshl_b32 s{T}, s{T}, 5')
    e(f's_and_b32 s{T+1}, s{K.sRT}, 1')
    if kind != 'o': e(f's_lshl_b32 s{T+1}, s{T+1}, 1')
    e(f's_add_u32 s{T}, s{T}, s{T+1}'); e(f's_lshl_b32 s{T}, s{T}, 7')
    e(f's_add_u32 s{T}, s{T}, {WS_HF + dict(e=12, l=4, o=8)[kind]*128:#x}')
    e(f'v_add_u32 v{K.vPO}, s{T}, v{V}')
def xres(e): e(f'buffer_load_dwordx4 {vr(K.vX, 4)}, v{K.vXo}, {S4(K.XR)}, 0 offen')
def gmask(G, k):
    st = (0,) + tuple(G)
    if k not in st[:-1]: return None
    return (st[st.index(k) + 1] + 1) // 2
def g2a(e, s0, npre, pp, mid=None):
    for i in range(npre + 1):
        if i == pp: probe_issue(e)
        if i < npre: wread(e, i)
        if i: e.wait_lg_tag(f'r{i-1}'); run(w2dma(e, i + 7))
    rd = npre; dm = npre + 8
    if mid: mid()
    e.stamp(s0)
    def ald(i):
        m = gmask(OPT['eg'], i) if i < 12 else gmask(OPT['lg'], i - 12)
        if i == 12: e.stamp(s0 + 2)
        if m:
            probe_check(e, m)
            if OPT['rp'] and m < (6 if i < 12 else 5): probe_issue(e)
        if i in (0, 12): e.stamp(s0 + 1 + i // 6)
        aload(e, i)
    e.stamp(2, 5)
    for i in range(8): ald(i)
    e.stamp(3, 5)
    al = 12
    for i in range(22):
        if i >= OPT['lc']:
            while al < 22 and (al - 8 if al < 20 else al - 10) < i: ald(al); al += 1
        mf2(e, i)
        if i in (0, 1, 3, 5, 7, 9, 11, 15): e.stamp(4 + (0, 1, 3, 5, 7, 9, 11, 15).index(i), 5)
        if i < 4: ald(8 + i)
        if i == OPT['lp']: probe_addr(e, 'l'); probe_issue(e)
        r0 = rd
        while rd < min(22, i + 13, dm) and rd < r0 + 2: wread(e, rd); rd += 1
        while dm < 22 and dm - 8 < r0: e.wait_lg_tag(f'r{dm-8}'); run(w2dma(e, dm)); dm += 1
def g2b(e, s0):
    for i in range(9):
        if i == OPT['bp']: probe_issue(e)
        if i < 8: wread(e, i)
    e.stamp(s0); probe_check(e, 4); e.stamp(s0 + 1)
    for i in range(8): aload(e, i, True)
    for i in range(8): mf2(e, i, True)
def tail(e, name):
    W = K.WR; R = K.AF; S = K.ACC2
    e(f'v_and_b32 v{V}, 15, v{L}'); e(f'v_lshrrev_b32 v{V+1}, 5, v{L}'); e(f'v_xor_b32 v{V}, v{V}, v{V+1}'); e(f'v_lshlrev_b32 v{V}, 4, v{V}')
    e(f'v_and_b32 v{V+1}, 7, v{L}'); e(f'v_lshl_add_u32 v{V}, v{V+1}, 8, v{V}')
    e(f'v_bfe_u32 v{V+2}, v{L}, 3, 2'); e(f'v_lshl_add_u32 v{V}, v{V+2}, 13, v{V}'); e(f'v_add_u32 v{W}, s{K.sOWN}, v{V}')
    for k in range(1, 8): e(f'v_xor_b32 v{W+k}, {32*k}, v{W}')
    for mt in range(2):
        for nt in range(2):
            for q in range(4): e(f'ds_write_b128 v{W + nt*4 + q}, {vr(S + (mt*2 + nt)*16 + 4*q, 4)} offset:{mt*32768}')
    e(f'v_lshrrev_b32 v{V}, 3, v{L}'); e(f's_lshl_b32 s{T}, s{K.sTP}, 3'); e(f'v_or_b32 v{V+2}, s{T}, v{V}')
    e(f'v_lshlrev_b32 v{V+1}, 1, v{V+1}'); e(f'v_xor_b32 v{V+1}, v{V+1}, v{V+2}'); e(f'v_lshlrev_b32 v{V+1}, 4, v{V+1}')
    e(f'v_lshl_add_u32 v{V}, v{V}, 8, v{V+1}'); e(f's_lshl_b32 s{T}, s{K.sW}, 13'); e(f'v_add_u32 v{V}, s{T}, v{V}')
    e(f'v_xor_b32 v{V+1}, 16, v{V}'); e(f'v_add_u32 v{V+2}, 65536, v{V}'); e(f'v_add_u32 v{V+3}, 65536, v{V+1}')
    e.waitcnt(lg=0); e('s_barrier')
    for p in range(8):
        for q in range(2): e(f'ds_read_b128 {vr(R + p*8 + q*4, 4)}, v{V + 2*(p >> 2) + q} offset:{(p & 3)*2048}')
    for q in range(4):
        e(f'v_lshlrev_b32 v{S + 2*q}, 16, v{K.vX + q}'); e(f'v_and_b32 v{S + 2*q + 1}, 0xffff0000, v{K.vX + q}')
    for p in range(8):
        for q in range(8): e(f'v_add_f32 v{S + q}, v{S + q}, v{R + p*8 + q}')
    for q in range(4): e(f'v_cvt_pk_bf16_f32 v{S + 8 + q}, v{S + 2*q}, v{S + 2*q + 1}')
    e(f'buffer_store_dwordx4 {vr(S + 8, 4)}, v{K.vXo}, {S4(K.OUT)}, 0 offen')

def role_A(e, isQ, name):
    XA, WA, FRB = 24, 32, 48
    dpt = OPT['dq' if isQ else 'dk']; NB = dpt + 1
    ACC = 108; ROWX = 128
    STA, GA, VKV, CSS, SEL, CSR, CACC = 34, 35, 37, 38, 44, 20, 252
    if isQ: nx = 2; PHR = 96; MR, sS, sCc, MSR = 140, 141, 146, 144; assert NB <= 4; grs, guo = 192, G6U
    else: nx = 4; PHR = 40; MR, sS, sCc, MSR = 88, 89, 100, 96; assert NB == 3; grs, guo = 160, G5U
    fs = 4*(1 + nx)
    common2(e); RA = ROWX + 28; PZ = ROWX + 32
    row_load(e, ROWX, RA); tag_load(e)
    e(f's_lshl_b32 s{T+1}, s{K.sCG}, 10'); e(f's_add_u32 m0, s{T+1}, {PHL}')
    e(f's_lshl_b32 s{T}, s{K.sG}, 11'); e(f's_add_u32 s{T}, s{T}, s{T+1}'); e(f'v_lshlrev_b32 v{V}, 4, v{L}')
    e(f'buffer_load_dwordx4 v{V}, {S4(K.PH)}, s{T} offen lds', tag='ph')
    code_pf(e, name, 236)
    e.stamp(2, 3)
    hi = QSL[1] if isQ else 65536
    xaddr(e, XA, (K.sTP, 13) if isQ else None)
    for i in range(4): e(f'v_add_u32 v{XA+4+i}, {hi}, v{XA+i}')
    wparts(e); w128(e, WA)
    if isQ: e(f's_lshl_b32 s{T}, s{K.sCG}, 6'); e(f'v_xor_b32 v{WA}, s{T}, v{WA}'); e(f's_lshl_b32 s{T}, s{K.sA}, 5')
    else: e(f's_lshl_b32 s{T}, s{K.sA}, 5'); e(f'v_xor_b32 v{WA}, s{T}, v{WA}'); e(f'v_lshl_add_u32 v{WA}, v{V+2}, 13, v{WA}')
    e(f'v_add_u32 v{WA}, 16384, v{WA}')
    wgu(e, GA+1, grs, guo); e(f'v_add_u32 v{GA+1}, {GSL[0]}, v{GA+1}'); e(f'v_add_u32 v{GA}, s{T}, v{GA+1}')
    if isQ: e(f's_lshl_b32 s{T}, s{K.sTP}, 5'); e(f'v_add_u32 v{GA+1}, s{T}, v{GA+1}')
    e(f'v_add_u32 v{WA+1}, {hi}, v{WA}')
    misc_setup(e, False); p2_setup(e, 65536); g2a_bases(e); probe_addr(e, 'z' if isQ else 'e')
    e(f'v_and_b32 v{STA}, 31, v{L}'); e(f'v_lshlrev_b32 v{STA}, 2, v{STA}')
    e(f'v_lshlrev_b32 v{CSS}, 1, v{STA}'); e(f's_and_b32 s{T}, s{K.sR}, 7'); e(f's_lshl_b32 s{T}, s{T}, 8'); e(f'v_add_u32 v{CSS}, s{T}, v{CSS}')
    if isQ:
        e(f's_lshl_b32 s{T}, s{K.sTP}, 8'); e(f's_add_u32 s{T}, s{T}, {STL}'); e(f'v_add_u32 v{STA}, s{T}, v{STA}')
    else:
        for j in range(4): e(f'v_mov_b32 v{PZ+j}, -1')
        e(f's_lshl2_add_u32 s{T}, s{K.sG}, s{K.sA}'); e(f's_lshl4_add_u32 s{T+1}, s{T}, s{K.sR}'); e(f's_lshl_b32 s{T+1}, s{T+1}, 10'); e(f's_add_u32 s{T+1}, s{T+1}, {WS_KV:#x}')
        e(f's_lshl_b32 s{T}, s{T}, 10'); e(f's_lshl4_add_u32 s{T}, s{K.sR}, s{T}'); e(f's_add_u32 s{T}, s{T}, {WS_KZ:#x}')
        e(f'v_lshl_add_u32 v{VKV}, v{STA}, 2, s{T+1}'); e(f'v_mov_b32 v{V}, s{T}'); e(f'v_cmp_eq_u32 vcc, 64, v{STA}'); e(f'v_cndmask_b32 v{VKV}, v{VKV}, v{V}, vcc')
        e(f'v_bfrev_b32 v{V}, 2'); e(f'v_cmp_lt_u32 vcc, 64, v{STA}'); e(f'v_cndmask_b32 v{VKV}, v{VKV}, v{V}, vcc')
        e(f'v_and_b32 v{V}, 32, v{L}'); e(f'v_lshl_add_u32 v{VKV}, v{V}, 3, v{VKV}')
        e(f'v_add_u32 v{STA}, {STL}, v{STA}')
    e(f'v_lshrrev_b32 v{V}, 2, v{L}'); e(f'v_and_b32 v{V}, 4, v{V}'); e(f'v_and_b32 v{V+1}, 12, v{L}'); e(f'v_cmp_eq_u32 vcc, v{V}, v{V+1}')
    e(f'v_mov_b32 v{V}, 0x3f803f80')
    for j in range(4): e(f'v_cndmask_b32 v{SEL+j}, 0, v{V}, vcc')
    for j in range(1, 4): e(f'v_mov_b32 v{CSR+j}, 0')
    e.stamp(3, 3); e.wait_tag('row'); e.stamp(4, 3)
    stats(e, ROWX, RA, False)
    if not isQ:
        for q in range(2): e(f'buffer_store_dwordx4 {vr(PZ, 4)}, v{VKV}, {S4(K.WS)}, 0 offen offset:{512*q} sc1', tag='pz')
    e.stamp(1)
    e.wait_tag('ph')
    if isQ: e(f's_lshl_b32 s{T}, s{K.sCG}, 10')
    else: e(f's_lshl_b32 s{T}, s{K.sA}, 9')
    e(f's_add_u32 s{T}, s{T}, {PHL}'); phi_frags(e, PHR, 2 if isQ else 1, f's{T}')
    def reads(n):
        c, s = n >> 2, n & 3; b = FRB + (n % NB)*fs; wb = b + 4*nx
        if isQ: off = QSL[c % 5]; h = off >= hi; off -= hi*h
        else: sl = c % 4; h = sl >= 2; off = (sl & 1)*KSL
        wr = [f'ds_read_b64_tr_b16 {vr(wb + 2*r, 2)}, v{WA + h} offset:{off + (16*s + 4*r)*128}' for r in range(2)]
        xr = lambda i: f'ds_read_b128 {vr(b + 4*i, 4)}, v{XA + s + 4*h} offset:{off + 4096*i}'
        return [xr(0)] + wr + [xr(i) for i in range(1, nx)]
    ID0, ID1, RS = 28, 24, 104
    e.stamp(2, 1); e.waitcnt(lg=0); e('s_barrier'); e.stamp(2)
    if OPT['prio']: e('s_setprio 3')
    for n in range(dpt):
        for t in reads(n): e(t)
    dm = []; va = []; need = 0
    csr = [f'v_cvt_pk_bf16_f32 v{CACC+1}, v{CACC}, v{CACC}', f'v_and_b32 v{CACC+1}, 0xffff0000, v{CACC+1}', f'v_sub_f32 v{CACC}, v{CACC}, v{CACC+1}',
           f'v_cvt_pk_bf16_f32 v{CSR}, v{CACC+1}, v{CACC}']
    for n in range(32):
        rd = reads(n + dpt) if n + dpt < 32 else []
        bar = (n + dpt) % 4 == 0 and n + dpt <= 32; j = (n + dpt) // 4
        b = FRB + (n % NB)*fs
        if n == 16: dm = dm + [(nop, lambda: xres(e))]
        if n == 11 and not isQ: dm = dm + [(nop, lambda: pflag(e, 0, 'pz'))]
        for x in range(nx):
            if bar and x == 1:
                if j == 4: e.stamp(3)
                if j == 8: e.stamp(4)
                e.stamp(2 + j, 1)
                e.waitcnt(lg=0); e('s_barrier')
                if j == 8:
                    for k in range(nx): e(f'ds_read_b32 v{MSR+k}, v{STA} offset:{128*k}')
                    va = sum([derive(e, MSR+k, MR+2*k, sS+2*k, sCc+k, False, None if isQ else RS+k) for k in range(nx)], [])
                    sa = idsel(V, (ID0,) if isQ else (ID0, ID1)); va = sa[:6] + va + sa[6:]; need = len(sa) - 6
                for t in rd[:3]: e(t)
                rd = rd[3:]
            if dm: dm[0][0]()
            acc = vr(ACC + 16*x, 16)
            if x == 0: e(f'{MS} {vr(CACC, 4)}, {vr(SEL, 4)}, {vr(b + 4*nx, 4)}, {vr(CACC, 4) if n else 0}')
            e(f'{MF} {acc}, {vr(b + 4*nx, 4)}, {vr(b + 4*x, 4)}, {acc if n else 0}')
            if not (bar and x == 0):
                k = -(-len(rd) // max(1, nx - 1 - x))
                for t in rd[:k]: e(t)
                rd = rd[k:]
            if dm: dm[0][1](); dm = dm[1:]
            if n == 31 and x == 1: va = csr + va
            for t in va[:5]: e(t)
            va = va[5:]
    while len(va) > need: e(va.pop(0))
    CF = 48
    cr = [f'ds_read_b64_tr_b16 {vr(CF + 16*k + 4*s + 2*r, 2)}, v{GA + k} offset:{128*k + (16*s + 4*r)*grs}' for k in range(2) for s in range(4) for r in range(2)]
    for x in range(nx):
        acc = vr(ACC + 16*x, 16); e(f'{MF} {acc}, {vr(CSR, 4)}, {vr(MR + 2*x, 4)}, {acc}')
        for t in va[:5]: e(t)
        va = va[5:]
    for t in va: e(t)
    e.stamp(5); e.stamp(11, 1)
    if OPT['prio']: e(f's_setprio {OPT["pa"]}')
    P, CT, C5, LD, W, DA = (192, 148, 80, 168, 27, 164) if isQ else (172, 236, 80, 172, 33, GA)
    hi_ = lambda: OPT['pm'] and e('s_setprio 3')
    lo_ = lambda: OPT['pm'] and e(f's_setprio {OPT["pa"]}')
    hi_(); e.stamp(2, 4)
    for x in range(4):
        if isQ: epi_p(e, ACC + 8*x, PHR + 4*(x & 1), P + 16*x, CT + 4*x)
        else: epi_p(e, ACC + 16*x, PHR, P + 16*x, CT + 4*x)
        for t in cr[4*x:4*x+4]: e(t)
    lo_()
    larrive(e, FA_, 1)
    dm = [(lambda d=d: run([d])) for k in range(8) for d in w2dma(e, k)]
    def cv(d, src, n=8):
        for j in range(n): e(f'v_cvt_pk_bf16_f32 v{d+j}, v{src+2*j}, v{src+2*j+1}')
    def c5():
        hi_()
        for s in range(4):
            for k in range(2): e(f'{MS} {vr(C5 + 4*k, 4)}, {vr(SEL, 4)}, {vr(CF + 16*k + 4*s, 4)}, {vr(C5 + 4*k, 4) if s else 0}')
        lo_()
    def c5s():
        e(f's_lshl_b32 s{T}, s{K.sA}, 11'); e(f's_add_u32 s{K.sC0}, s{T}, s{K.sCS}'); e(f's_add_u32 s{K.sC1}, s{K.sCS}, {4*2048}')
        if isQ: e(f's_lshl_b32 s{T}, s{K.sTP}, 11'); e(f's_add_u32 s{K.sC1}, s{K.sC1}, s{T}')
        for k in range(2): e(f'v_mov_b32 v{C5+4*k+1}, s{K.sTAG}')
        e('s_mov_b32 exec_hi, 0')
        for k in range(2): e(f'buffer_store_dwordx2 {vr(C5 + 4*k, 2)}, v{CSS}, {S4(K.WS)}, s{(K.sC0, K.sC1)[k]} offen sc1')
        e('s_mov_b64 exec, -1')
    csl = cs_loads(W, LD, [K.sC0, K.sC1])
    def csi():
        e(f'v_and_b32 v{W}, 31, v{L}'); e(f'v_lshlrev_b32 v{W}, 3, v{W}'); e(f'v_and_b32 v{DA}, 32, v{L}'); e(f'v_lshl_add_u32 v{W}, v{DA}, 5, v{W}')
        for t in csl: e(t)
    def csd():
        gran_check(e, csl, [LD + 2*i + 1 for i in range(8)], V)
        e(f'v_subrev_u32 v{DA+1}, {FLG - CSL}, v{K.vFW}')
        if isQ: e(f's_lshl_b32 s{T}, s{K.sCG}, 9'); e(f'v_subrev_u32 v{DA}, s{T}, v{DA+1}')
        else: e(f'v_lshlrev_b32 v{DA}, 2, v{L}'); e(f'v_add_u32 v{DA}, {CSL}, v{DA}')
        cs_deliver(e, LD, V, [(DA+1, 0), (DA, 1024)])
        larrive(e, FA_, 2)
    kd, ci, cd = (OPT['qd'], OPT['ciq'], OPT['cdq']) if isQ else (OPT['kd'], OPT['ci'], OPT['cd'])
    def fillers(fl, x):
        for k in range(kd): fl.setdefault(OPT['ka'] + OPT['ks']*k, []).append(dm.pop(0))
        if x == ci: fl.setdefault(44, []).append(csi)
        return fl
    if isQ:
        PHI, CT, KZ, ZT, KP, KA, ID = 32, 64, 80, 88, 192, 24, ID0
        for x in range(4):
            fl = fillers({} if x else {4: [c5], 26: [c5s]}, x)
            softmax(e, P + 16*x, V, PHI + 8*x, sCc + (x >> 1), None, fl)
            e.stamp(4 + 2*x, 4)
            if x == cd: csd()
        e.stamp(6)
        if ci == 4: csi()
        probe_issue(e)
        if cd == 4: csd()
        for f in dm: f()
        if cd == 5: csd()
        e(f's_lshl2_add_u32 s{T+3}, s{K.sG}, s{K.sA}')
        e(f's_lshl_b32 s{K.sC0}, s{T+3}, 14'); e(f's_add_u32 s{K.sC0}, s{K.sC0}, {WS_KV:#x}'); e(f's_lshl_b32 s{K.sC1}, s{T+3}, 10'); e(f's_add_u32 s{K.sC1}, s{K.sC1}, {WS_KZ:#x}')
        e(f's_and_b32 s{T+2}, s{T+3}, 30'); e(f's_lshl_b32 s{T+2}, s{T+2}, 16'); e(f's_add_u32 s{T+2}, s{T+2}, {WS_O:#x}')
        e(f'v_lshlrev_b32 v{KA}, 4, v{L}')
        e(f'v_and_b32 v{KA+1}, 48, v{L}'); e(f'v_lshl_add_u32 v{KA+1}, v{KA+1}, 4, v{KA}'); e(f's_lshl_b32 s{T}, s{K.sA}, 11'); e(f's_add_u32 s{T}, s{T}, {KVL}')
        e(f'v_add_u32 v{KA+1}, s{T}, v{KA+1}'); e(f's_and_b32 s{T}, s{T}, {~2048 & 0xffffffff:#x}'); e(f'v_add_u32 v{KA+2}, s{T}, v{KA}')
        probe_check(e, 0); probe_addr(e, 'e')
        def mid():
            e.stamp(7)
            kz = [f'buffer_load_dwordx4 {vr(KZ, 4)}, v{KA}, {S4(K.WS)}, s{K.sC1} offen sc1']; kl = []
            for p in range(16):
                if p % 4 == 0: kl.append(f's_add_u32 s{T}, s{K.sC0}, {p*1024}')
                kl.append(f'buffer_load_dwordx4 {vr(KP + 4*p, 4)}, v{KA}, {S4(K.WS)}, s{T} offen offset:{(p & 3)*1024} sc1')
            km = [f'{MF} {vr(CT, 16)}, {vr(ID, 4)}, {vr(KP + 4*p, 4)}, {vr(CT, 16) if p else 0}' for p in range(16)]
            zs = []
            for q in range(4): zs += [f'v_lshlrev_b32 v{ZT+2*q}, 16, v{KZ+q}', f'v_and_b32 v{ZT+2*q+1}, 0xffff0000, v{KZ+q}']
            for d in (8, 4, 2, 1): zs += [f'v_add_f32_dpp v{ZT+q}, v{ZT+q}, v{ZT+q} row_ror:{d} row_mask:0xf bank_mask:0xf' for q in range(8)]
            zs += [f'v_cvt_pk_bf16_f32 v{ZT+q}, v{ZT+2*q}, v{ZT+2*q+1}' for q in range(4)]
            e(kz[0])
            verify(e, [f'v_max3_u32 v{V}, v{KZ}, v{KZ+1}, v{KZ+2}', f'v_max_u32 v{V}, v{V}, v{KZ+3}', f'v_cmp_eq_u32 vcc, -1, v{V}'], kz)
            e.stamp(2, 6)
            if OPT['prio']: e('s_setprio 3')
            for t in kl + zs: e(t)
            e.stamp(3, 6)
            lissue(e, FF_, V+2)
            chk = maxchain(range(KP, KP + 64), V); b = chk
            for p in range(16):
                e(km[p])
                if p:
                    for t in b[:2]: e(t)
                    b = b[2:]
            for t in b: e(t)
            verify(e, chk, kl, km, inl=False)
            e.stamp(4, 6)
            lcheck(e, FF_, 8, V+2)
            cv(CT, CT, 4)
            e(f'ds_write_b128 v{KA+1}, {vr(ZT, 4)} offset:256'); e(f'ds_write_b128 v{KA+1}, {vr(CT, 4)}')
            larrive(e, FA_, 3); lwait(e, FA_, 3, V+2)
            e.stamp(5, 6)
            for h in range(2):
                for q in range(2): e(f'ds_read_b128 {vr(CT + 8*h + 4*q, 4)}, v{KA+2} offset:{h*2048 + q*1024}')
            for x in range(4):
                c = vr(192 + 16*x, 16)
                for q in range(2): e(f'{MF} {c}, {vr(CT + 8*(x & 1) + 4*q, 4)}, {vr(PHI + 8*x + 4*q, 4)}, {c if q else 0}')
            for x in range(4):
                c = 192 + 16*x; o = 80 + 4*x
                e(f'v_add_f32 v{c+8}, 0x358637bd, v{c+8}'); e(f'v_rcp_f32 v{c+8}, v{c+8}')
                for q in range(8): e(f'v_mul_f32 v{c+q}, v{c+q}, v{c+8}')
                cv(o, c, 4)
                e(f's_add_u32 s{T}, s{T+2}, {(x & 1)*65536}')
                e(f'buffer_store_dwordx4 {vr(o, 4)}, v{K.vST}, {S4(K.WS)}, s{T} offen offset:{(x >> 1)*1024} sc1', tag='o')
            e.stamp(6, 6)
            probe_issue(e); pflag(e, 4, 'o')
            e.stamp(7, 6)
            if OPT['prio']: e('s_setprio 0')
        g2a(e, 8, OPT['npq'], -1, mid)
    else:
        ONE, TV = 48, 64
        def vprep(x):
            a = ACC + 16*x + 8
            for j in range(8): e(f'v_mul_f32 v{a+j}, v{RS+x}, v{a+j}')
            cv(a, a, 4)
        vprep(0)
        e.stamp(3, 4)
        def kvm(x, k): hi_(); e(f'{MF} {vr(CT, 16)}, {vr(ACC + 16*x + 4*k, 4)}, {vr(ACC + 16*x + 8 + 4*k, 4)}, {vr(CT, 16) if x + k else 0}'); lo_()
        def tv(x): hi_(); e(f'{MF} {vr(TV, 16)}, {vr(ACC + 16*x + 8, 4)}, {vr(ID0, 4)}, {vr(ONE, 16)}'); lo_()
        def tp(x):
            hi_()
            for k in range(2): e(f'{MF} {vr(P + 16*x, 16)}, {vr(ACC + 16*x + 4*k, 4)}, {vr((ID0, ID1)[k], 4)}, {vr(P + 16*x, 16) if k else 0}')
            lo_()
        def ones():
            e(f's_mov_b32 vcc_lo, 0xffff0000'); e(f's_mov_b32 vcc_hi, 0xffff0000')
            for j in range(16): e(f'v_cndmask_b32_e64 v{ONE+j}, 0, 1.0, vcc')
        for x in range(4):
            a = ACC + 16*x
            if x: fl = {0: [lambda: vprep(x)], 4: [lambda: tv(x)], 16: [lambda: cv(a - 16, P + 16*x - 16)], 22: [lambda: kvm(x - 1, 0)], 30: [lambda: kvm(x - 1, 1)], 40: [lambda: cv(a + 8, TV)]}
            else: fl = {4: [c5], 26: [c5s, ones], 34: [lambda: tv(0)], 56: [lambda: cv(a + 8, TV)]}
            softmax(e, P + 16*x, V, a, sCc+x, None, fillers(fl, x))
            e.stamp(4 + 2*x, 4)
            tp(x)
            if x == cd: csd()
            e.stamp(5 + 2*x, 4)
        e.stamp(6)
        cv(a, P + 48); kvm(3, 0); kvm(3, 1)
        if ci == 4: csi()
        cv(CT, CT)
        for q in range(2): e(f'buffer_store_dwordx4 {vr(CT + 4*q, 4)}, v{VKV}, {S4(K.WS)}, 0 offen offset:{512*q} sc1')
        e.stamp(7)
        if OPT['prio']: e('s_setprio 0')
        if cd == 4: csd()
        for f in dm: f()
        if cd == 5: csd()
        g2a(e, 8, OPT['npk'], OPT['ppk'])

def role_B(e, isQ, name):
    DX, DW, XA, STA, STG = 24, 25, 32, 46, 124
    WA = 21; X = 128
    if isQ: nu = 6; GD = [2, 3, 20]; ACC = 32; ring = [4, 8, 24, 28]; GS = GSQ; grs, guo = 192, G6U
    else: nu = 5; GD = [8, 9, 10, 11, 20]; ACC = 48; ring = [24, 28, 32, 36, 40, 44]; GS = GSL; grs, guo = 160, G5U
    NS = len(GS)
    e(f'v_lshrrev_b32 v{V}, 3, v{L}'); e(f'v_and_b32 v{V+1}, 7, v{L}')
    e(f'v_lshrrev_b32 v{V+2}, 4, v{L}'); e(f's_lshl_b32 s{T}, s{K.sTP}, 2'); e(f'v_add_u32 v{V+2}, s{T}, v{V+2}')
    e(f'v_xor_b32 v{V+2}, v{V+2}, v{V+1}'); e(f'v_lshlrev_b32 v{V+2}, 4, v{V+2}'); e(f'v_lshl_add_u32 v{DX}, v{V}, 10, v{V+2}')
    e(f's_lshl_b32 s{T}, s{K.sR}, 17'); e(f's_lshl_b32 s{T+1}, s{K.sA}, 13'); e(f's_add_u32 s{T}, s{T}, s{T+1}'); e(f'v_add_u32 v{DX}, s{T}, v{DX}')
    e(f's_lshl_b32 s{K.sLX}, s{K.sA}, 10')
    e(f'v_lshlrev_b32 v{V+2}, 1, v{V}'); e(f'v_and_b32 v{V+2}, 4, v{V+2}'); e(f'v_xor_b32 v{V+2}, v{V+2}, v{V+1}')
    e(f'v_lshlrev_b32 v{V+2}, 4, v{V+2}'); e(f'v_mul_u32_u24 v{V}, 3072, v{V}'); e(f'v_add_u32 v{V+2}, v{V+2}, v{V}')
    e(f's_mul_i32 s{T}, s{K.sA}, {8*3072}'); e(f's_lshl_b32 s{T+1}, s{K.sG}, 7'); e(f's_add_u32 s{T}, s{T}, s{T+1}')
    if not isQ: e(f's_add_u32 s{T}, s{T}, 1024')
    e(f'v_add_u32 v{DW}, s{T}, v{V+2}')
    if not isQ: e(f'v_xor_b32 v{DW+1}, 32, v{DW}'); e(f'v_add_u32 v{DW+1}, 1024, v{DW+1}')
    def gu_setup(e):
        n, mul = (12, 5462) if isQ else (10, 6554)
        e(f's_mul_i32 s{T}, s{K.sTP}, {32*2752}'); e(f's_lshl_b32 s{T+1}, s{K.sP}, 5'); e(f's_add_u32 s{T}, s{T}, s{T+1}')
        for p, d in enumerate(GD):
            e(f'v_add_u32 v{V}, {64*p}, v{L}'); e(f'v_mul_u32_u24 v{V+1}, {mul}, v{V}'); e(f'v_lshrrev_b32 v{V+1}, 16, v{V+1}')
            e(f'v_mul_u32_u24 v{V+1}, {2752 - 16*n}, v{V+1}'); e(f'v_lshl_add_u32 v{V+1}, v{V}, 4, v{V+1}'); e(f'v_add_u32 v{d}, s{T}, v{V+1}')
        e(f's_mul_i32 s{K.sLD}, s{K.sCG}, {guo}'); e(f's_mul_i32 s{T}, s{K.sTP}, {32*16*n}'); e(f's_add_u32 s{K.sLD}, s{K.sLD}, s{T}')
        e(f's_cmp_eq_u32 s{K.sCG}, 0'); e(f's_cselect_b32 s{K.GU}, s{K.GU}, s{K.GU+2}'); e(f's_cselect_b32 s{K.GU+1}, s{K.GU+1}, s{K.GU+3}')
        e(f's_mov_b32 s{K.GU+2}, {512*2752:#x}'); e(f's_mov_b32 s{K.GU+3}, 0x20000')
    def item(nm):
        k, j = nm[0], int(nm[1:])
        if k == 'c':
            def pre0():
                e(f's_add_u32 s{K.sC1}, s{K.sCH}, {j}'); e(f's_and_b32 s{K.sC1}, s{K.sC1}, 7')
                e(f's_lshl_b32 s{K.sC0}, s{K.sC1}, 7'); e(f's_mul_i32 s{K.sC1}, s{K.sC1}, {64*3072}')
            sl = QSL[j % 5] if isQ else (j % 4)*KSL
            Ls = [(DX, K.XR, K.sC0, q*32768, K.sLX, sl + q*4096) for q in range(4)]
            Ls += [(DW+m, K.WQ, K.sC1, q*32*3072, K.sLX, sl + 16384 + m*8192 + q*4096) for q in range(2) for m in range(1 if isQ else 2)]
        else:
            def pre0():
                e(f's_add_u32 s{K.sC1}, s{K.sCH}, s{K.sPOS}'); e(f's_add_u32 s{K.sC1}, s{K.sC1}, {j}'); e(f's_and_b32 s{K.sC1}, s{K.sC1}, 7')
                e(f's_mul_i32 s{K.sC1}, s{K.sC1}, {64*2752}')
            if isQ: Ls = [(GD[p], K.GU, K.sC1, q*16*2752, K.sLD, GS[j % NS] + q*3072 + p*1024) for q in range(2) for p in range(3)]
            else: Ls = [(GD[p], K.GU, K.sC1, 0, K.sLD, GS[j % NS] + p*1024) for p in range(5)]
        return [mkdma(e, *a, nm, pre0 if i == 0 else None) for i, a in enumerate(Ls)]
    hi = QSL[1] if isQ else 65536
    F0 = Rec(); F1 = Rec(); F2 = Rec()
    def setup0(e):
        common2(e)
        xaddr(e, XA, (K.sA, 12))
        for i in range(4): e(f'v_add_u32 v{XA+4+i}, {hi}, v{XA+i}')
        wparts(e)
        wgu(e, WA+1, grs, guo); e(f'v_add_u32 v{WA}, {GS[0]}, v{WA+1}')
        e(f'v_and_b32 v{V}, 31, v{L}'); e(f'v_lshlrev_b32 v{V}, 3, v{V}')
        e(f's_lshl_b32 s{T}, s{K.sR}, 2'); e(f's_add_u32 s{T}, s{T}, s{K.sA}'); e(f's_lshl_b32 s{T}, s{T}, 8'); e(f's_add_u32 s{T}, s{T}, {WS_ST:#x}'); e(f'v_add_u32 v{STA}, s{T}, v{V}')
        misc_setup(e, True); tag_mix(e)
    setup0(F0)
    gu_setup(F1)
    if isQ: p2_setup(F2, 0, 148)
    else: p2_setup(F1, 0)
    NV = 8 // OPT['rot']
    Lq = [f'buffer_load_dwordx2 {vr(STG, 2)}, v{STA}, {S4(K.WS)}, 0 offen sc1']
    ng = OPT['ngq' if isQ else 'ng']; LA = OPT['laq' if isQ else 'lak']
    names = ('c0 c1 c2 c3 c4 c5 c6 c7 ' + ' '.join(f'g{i}' for i in range(ng))).split()
    ops = []; endp = {}; begp = {}
    for nm in names: begp[nm] = len(ops); ops += item(nm); endp[nm] = len(ops)
    bpos = {min(endp[f'c{j}'] + LA, len(ops) - 7 + j): j for j in range(8)}
    pb = {j: p for p, j in bpos.items()}; assert len(pb) == 8
    for nm, j in ([(f'c{k+5}', k+1) for k in range(3)] + [('g1', 4), ('g2', 5)] if isQ else [(f'c{k+4}', k+1) for k in range(4)] + [('g1', 5), ('g2', 6), ('g3', 6)]):
        assert nm not in begp or begp[nm] >= pb[j], nm
    fill = F0.groups(); f1j = 1 if isQ else 3
    def flush(n=None):
        nonlocal fill
        k = 0
        while fill and (n is None or k < n):
            for t, g in fill[0]: e(t, g); k += 1
            fill = fill[1:]
    def barrier(j):
        nonlocal fill
        flush()
        if j == 0: e.stamp(1)
        e.stamp(3 + j, 3)
        e.wait_tag(f'c{j}'); drain_lg(e)
        if j in (0, 4): e.stamp(2 + (j >> 2))
        e.stamp(2 + j, 1)
        e('s_barrier')
        if isQ: off = QSL[j % 5]; h = off >= hi; off -= hi*h
        else: sl = j % 4; h = sl >= 2; off = (sl & 1)*KSL
        if NV == 1:
            for s in range(4): e(f'ds_read_b128 {vr(X + 16*j + 4*s, 4)}, v{XA + s + 4*h} offset:{off}')
        else:
            J = newlab('xj')
            for v in range(NV):
                if v + 1 < NV: e(f's_cmp_lg_u32 s{K.sPOS}, {v}'); e(f's_cbranch_scc1 {J}_{v}')
                for s in range(4): e.raw(f'  ds_read_b128 {vr(X + 16*((j - v) & 7) + 4*s, 4)}, v{XA + s + 4*h} offset:{off}')
                if v + 1 < NV: e(f's_branch {J}'); e.label(f'{J}_{v}')
            e.label(J)
        if j == f1j: fill = fill + F1.groups()
        if j == OPT['ljq' if isQ else 'lj']:
            for t in Lq: e(t)
    e.stamp(2, 3)
    for p, (a, b) in enumerate(ops):
        if p in bpos: barrier(bpos[p])
        if p == begp['g0']: assert p >= pb[f1j + 1]
        a(); b()
        if p == 1: tag_load(e)
        if p >= endp['c0'] - 1: flush(OPT['nf'])
    if len(ops) in bpos: barrier(bpos[len(ops)])
    flush()
    gran_check(e, Lq, [STG + 1], V)
    e(f'v_and_b32 v{V}, 31, v{L}'); e(f'v_lshlrev_b32 v{V}, 2, v{V}'); e(f's_lshl_b32 s{T}, s{K.sA}, 7'); e(f's_add_u32 s{T}, s{T}, {STL}'); e(f'v_add_u32 v{V}, s{T}, v{V}')
    e(f'ds_write_b32 v{V}, v{STG}'); e(f'v_mov_b32 v{K.vMS}, v{STG}')
    e.stamp(11, 3)
    e.wait_tag('g0'); drain_lg(e); e.stamp(4); e.stamp(10, 1); e.stamp(2, 2); e('s_barrier')
    if OPT['prio']: e(f's_setprio {OPT["pb"]}')
    D = OPT['db']; per = 4*nu; NM = 8*per
    free = list(ring); slot = {}; rat = {}; nr = 0; ever = len(ring)
    CSR, MR, sS, sCc, CSA = (128 + 32*isQ + k for k in (0, 14, 18, 19, 20))
    for t in range(-1, NM):
        if t >= 1:
            r = slot[t - 1]
            if not (isQ and r < X and ever >= D + 1 + len(ring)): free.append(r)
            if isQ and t % nu == 0 and ever < D + 1 + len(ring): free.append(X + 4*(t // nu - 1)); ever += 1
        while free and nr < NM and nr <= t + D + (t < 0): slot[nr] = free.pop(0); rat[nr] = t; nr += 1
        assert nr > t + 1 or nr == NM
    assert all(rat[t] == t - D for t in range(per - 1, NM)) and X + 4*(D + 1) <= CSR
    lastlow = max(t for t in range(NM) if slot[t] < X) if isQ else 0
    def rd(t):
        i, s, u = t // per, (t % per) // nu, t % nu
        va, off = WA + (i % NS > 0), (GS[i % NS] if i % NS else 0) + 32*u
        for r in range(2): e(f'ds_read_b64_tr_b16 {vr(slot[t] + 2*r, 2)}, v{va} offset:{off + (16*s + 4*r)*grs}')
    for t in range(NM):
        if rat[t] == -1: rd(t)
    pre = {t: [] for t in range(NM)}; post = {t: [] for t in range(NM)}
    for i in range(8 - NS): post[per*(i + 1) - D - 1].append(lambda i=i: larrive(e, FF_, i + 1))
    gl = 0
    for i in range(ng, 8):
        t0 = (nu*OPT['gs'] if OPT['ge'] else per)*(i - ng) + OPT['g0']
        if i >= NS:
            t0 = max(t0, per*(i - NS + 1) - D + 7)
            post[t0 - 4].append(lambda: lissue(e, FF_, V+2))
            post[t0 - 1].append(lambda i=i: lcheck(e, FF_, i - NS + 1, V+2))
            if i == NS:
                post[t0 - 5].append(lambda: lissue(e, FA_, V+3))
                post[t0 - 2].append(lambda: lcheck(e, FA_, 1, V+3))
        for k, (a, b) in enumerate(item(f'g{i}')): gl = t0 + OPT['gs']*k; pre[gl].append(a); post[gl].append(b)
        assert gl < per*i - D - 8
    for i in range(1, 8):
        post[per*i - D - 8].append(lambda i=i: (e.wait_tag(f'g{i}'), larrive(e, FR_, i)))
        post[per*i - D - 4].append(lambda: lissue(e, FR_, V+1))
        post[per*i - D - 1].append(lambda i=i: lcheck(e, FR_, i, V+1))
    post[NM - D - 1].append(lambda: larrive(e, FF_, 8))
    post[NM - 2].append(lambda: lissue(e, FF_, V+2))
    va = [f'v_mov_b32 v{MR+j}, 0' for j in (1, 2, 3)] + derive(e, K.vMS, MR, sS, sCc, True)
    va += [f'v_lshlrev_b32 v{CSA}, 2, v{L}', f'v_add_u32 v{CSA}, {CSL}, v{CSA}']
    for k, t in enumerate(va): post[NM - 30 + k].append(lambda t=t: e(t))
    t = max(gl, lastlow) + 2
    for k, g in enumerate(F2.groups()): post[t + k // 2].append(lambda g=g: [e(*x) for x in g])
    csr = lambda: [e(f'ds_read_b32 v{CSR+2*u}, v{CSA} offset:{256*u}') for u in range(nu)]
    post[NM - 10].append(lambda: lissue(e, FA_, V+3))
    post[NM - 6].append(lambda: (lcheck(e, FA_, 2, V+3), csr()))
    for t in range(NM):
        i, s, u = t // per, (t % per) // nu, t % nu
        for f in pre[t]: f()
        acc = vr(ACC + 16*u, 16)
        e(f'{MF} {acc}, {vr(slot[t], 4)}, {vr(X + 16*i + 4*s, 4)}, {acc if t >= nu else 0}')
        for r in range(t + 1, min(NM, t + D + 1)):
            if rat[r] == t: rd(r)
        for f in post[t]: f()
        if t % per == per - 1: e.stamp(3 + i, 2)
    for u in range(nu):
        acc = vr(ACC + 16*u, 16); e(f'{MF} {acc}, {vr(CSR + 2*u, 4)}, {vr(MR, 4)}, {acc}')
    e.stamp(5)
    g2b_bases(e)
    lcheck(e, FF_, 8, V+2)
    W2 = sum([w2dma(e, i, True) for i in range(8)], [])
    if OPT['prio']: e('s_setprio 3')
    e(f's_lshl_b32 s{T+1}, s{K.sP}, 16')
    for u in range(nu):
        epi_gu(e, ACC + 16*u, 192 + 8*(u & 1), sS, sCc, T+1, u, 0, W2[:OPT['nw1']], f'h{u}'); W2 = W2[OPT['nw1']:]
        for k, at in enumerate(OPT['fq' if isQ else 'fk']):
            if at == u: pflag(e, 2*k + 2, f'h{2*k+1}')
    e.stamp(6); run(W2[:OPT['nw2']]); W2 = W2[OPT['nw2']:]; pflag(e, nu, f'h{nu-1}'); e.stamp(7)
    if OPT['prio']: e('s_setprio 0')
    run(W2); xres(e); probe_addr(e, 'o'); e.stamp(8)
    g2b(e, 10)

def gen(name):
    Stream.TSB = 72
    e = Stream(); common(e, name)
    txt = e.text(); last = None
    for role in (1, 3, 0, 2):
        f = e.fork()
        if role != 1: f.label(f'{name}_r{role}')
        (role_B if role & 1 else role_A)(f, role >= 2, name)
        f.waitcnt(vm=0); f.stamp(12)
        if role != 2: f(f's_branch {name}_tail')
        txt += f.text(); last = f
        if role != 2: txt += ''.join(OOL); OOL.clear()
    f = Stream(); f.label(f'{name}_tail'); f.smem = True
    tail(f, name)
    f(f's_or_b32 s{T}, s2, s{K.sW}'); f(f's_cbranch_scc1 {name}_nb')
    f(f's_mov_b32 s{T+1}, 0'); flag(f, T+1, WS_EP)
    f.label(f'{name}_nb')
    f.stamp_flush(14, K.sWS, K.sW, WS_TS, v=2)
    f.label(f'{name}_end'); f('s_endpgm')
    txt += f.text() + ''.join(OOL); OOL.clear()
    return txt

def full(): return wrap([(NAME + '_kernel', gen(NAME + '_kernel'), 512, 163840)])
if __name__ == '__main__':
    open('v7.s', 'w').write(full())
```
